```python
import torch

def _softmax(x, axis=-1):
    return torch.softmax(x, dim=axis)
def _gelu(x):
    return torch.nn.functional.gelu(x, approximate="tanh")
def _silu(x):
    return torch.nn.functional.silu(x)
def _sigmoid(x):
    return torch.sigmoid(x)
def _layernorm(x, axis=-1, eps=1e-5):
    m = x.mean(dim=axis, keepdim=True)
    v = x.var(dim=axis, keepdim=True, unbiased=False)
    return (x - m) / torch.sqrt(v + eps)
def _scatter_add(tgt, idx, src, axis=0):
    return tgt.clone().index_add_(axis, idx, src)
def _segment_sum(src, seg, n):
    out = torch.zeros((n,) + src.shape[1:], dtype=src.dtype)
    return out.index_add_(0, seg, src)
def _pad(x, pw):
    flat = tuple(v for pair in reversed(pw) for v in pair)
    return torch.nn.functional.pad(x, flat)

kernel_name = 'sequential_preLN__sliding_block__glu_gated_glu__prompt'

def setup_inputs():

    _w = (lambda a: (lambda t: t.to(torch.bfloat16) if t.is_floating_point() else t)(torch.as_tensor(a)))
    def _A_setup():
        B, S, D = 1, 2048, 1024
        return {
            "x": _w((lambda *s: torch.randn(*s, dtype=torch.bfloat16) * 0.05)(B, S, D)),
            "wqkv": _w((lambda *s: torch.randn(*s, dtype=torch.bfloat16) * 0.05)(D, 3 * D)),
            "wo": _w((lambda *s: torch.randn(*s, dtype=torch.bfloat16) * 0.05)(D, D)),
        }
    _A_in = _A_setup()

    def _B_setup():
        B, S, D, F = 1, 2048, 1024, 3584
        return {
            "x": _w((lambda *s: torch.randn(*s, dtype=torch.bfloat16) * 0.05)(B, S, D)),
            "w_gate": _w((lambda *s: torch.randn(*s, dtype=torch.bfloat16) * 0.05)(D, F)),
            "w_up": _w((lambda *s: torch.randn(*s, dtype=torch.bfloat16) * 0.05)(D, F)),
            "w_down": _w((lambda *s: torch.randn(*s, dtype=torch.bfloat16) * 0.05)(F, D)),
        }
    _B_in = _B_setup()

    return {
        "A_x": _A_in["x"],
        "A_wqkv": _A_in["wqkv"],
        "A_wo": _A_in["wo"],
        "B_x": _B_in["x"],
        "B_w_gate": _B_in["w_gate"],
        "B_w_up": _B_in["w_up"],
        "B_w_down": _B_in["w_down"],
    }

def reference(A_x, A_wqkv, A_wo, B_x, B_w_gate, B_w_up, B_w_down):
    def _A_ref(x, wqkv, wo):
        B, S, D = x.shape
        H = 32; Dh = D // H; W = 256
        qkv = (lambda x, *d: x.permute(*d))((x @ wqkv).reshape(B, S, 3, H, Dh), 2, 0, 3, 1, 4)
        q, k, v = qkv[0], qkv[1], qkv[2]
        scores = torch.einsum("bhqd,bhkd->bhqk", q, k) * (Dh ** -0.5)
        idx = torch.arange(S)
        mask = (idx[:, None] - idx[None, :] >= 0) & (idx[:, None] - idx[None, :] < W)
        scores = torch.where(mask[None, None], scores, -1e9)
        p = _softmax(scores, axis=-1)
        o = torch.einsum("bhqk,bhkd->bhqd", p, v)
        return (lambda x, *d: x.permute(*d))(o, 0, 2, 1, 3).reshape(B, S, D) @ wo

    def _B_ref(x, w_gate, w_up, w_down):
        g = torch.einsum("bsd,df->bsf", x, w_gate)
        u = torch.einsum("bsd,df->bsf", x, w_up)
        h = _sigmoid(g) * u
        return torch.einsum("bsf,fd->bsd", h, w_down)

    x = A_x
    h = x + _A_ref(_layernorm(x, axis=-1), A_wqkv, A_wo)
    h2 = h + _B_ref(_layernorm(h, axis=-1), B_w_gate, B_w_up, B_w_down)
    return h2
```

```python
import re

class Asm:
    def __init__(self):
        self.lines = []
        self.nlab = 0
    def __call__(self, s):
        for l in s.split("\n"):
            l = l.strip()
            if l:
                self.lines.append(l)
    def label(self, base="L"):
        self.nlab += 1
        return f"{base}_{self.nlab}"
    def text(self, pad=True):
        lines = pad_hazards(self.lines) if pad else self.lines
        return "\n".join(l if l.endswith(":") else "    " + l for l in lines) + "\n"

_REG = re.compile(r"^-?\|?(?:abs\()?([vas])(?:(\d+)|\[(\d+):(\d+)\])\)?\|?$")
def regs_of(tok):
    tok = tok.strip()
    if tok in ("vcc", "vcc_lo", "vcc_hi"): return {("s", "vcc")}
    if tok in ("exec", "exec_lo", "exec_hi"): return {("s", "exec")}
    if tok == "m0": return {("s", "m0")}
    m = _REG.match(tok)
    if not m: return set()
    k = m.group(1)
    if m.group(2) is not None: return {(k, int(m.group(2)))}
    return {(k, i) for i in range(int(m.group(3)), int(m.group(4)) + 1)}

TRANS = ("v_exp_f32", "v_log_f32", "v_rcp_f32", "v_rsq_f32", "v_sqrt_f32", "v_sin_f32", "v_cos_f32", "v_rcp_iflag_f32")
class Ins:
    __slots__ = ("txt", "op", "kind", "rd", "wr", "nop", "srcC", "passes", "store_data", "lds_dma", "dpp")
    def __init__(self, txt):
        self.txt = txt
        body = txt.split(";")[0].strip()
        self.rd, self.wr, self.srcC, self.store_data = set(), set(), set(), set()
        self.nop = 1; self.passes = 0; self.lds_dma = False; self.dpp = False
        if body.endswith(":") or not body or body.startswith("."):
            self.kind = "label"; self.op = ""; self.nop = 0; return
        parts = body.split(None, 1)
        op = parts[0]; self.op = op
        rest = parts[1] if len(parts) > 1 else ""
        toks = [t.strip() for t in rest.split(",")] if rest else []
        mods = ""
        if toks:
            sp = toks[-1].split(None, 1)
            toks[-1] = sp[0]
            mods = sp[1] if len(sp) > 1 else ""
        R = [regs_of(t) for t in toks]
        base = re.sub(r"_(e32|e64|dpp|sdwa)$", "", op)
        if op == "s_nop":
            self.kind = "nop"; self.nop = int(toks[0], 0) + 1
        elif op.startswith("v_mfma"):
            self.kind = "mfma"
            self.wr = R[0]; self.rd = R[1] | R[2] | R[3]; self.srcC = R[3]
            self.passes = 8 if "32x32" in op else 4
        elif op.startswith("v_"):
            self.kind = "trans" if base in TRANS else "valu"
            self.dpp = op.endswith("_dpp") or "row_" in mods or "quad_perm" in mods
            if op.startswith("v_permlane") and "swap" in op:
                self.kind = "permlane"; self.wr = R[0] | R[1]; self.rd = R[0] | R[1]
            elif base in ("v_readfirstlane_b32", "v_readlane_b32"):
                self.kind = "readlane"; self.wr = R[0]; self.rd = set().union(*R[1:])
            elif op.startswith("v_cmpx"):
                self.wr = R[0] | {("s", "exec")}; self.rd = set().union(*R[1:])
            elif base in ("v_add_co_u32", "v_sub_co_u32", "v_addc_co_u32", "v_subb_co_u32"):
                self.wr = R[0] | R[1]; self.rd = set().union(*R[2:])
            else:
                self.wr = R[0]; self.rd = set().union(*R[1:]) if len(R) > 1 else set()
                if base in ("v_fmac_f32", "v_dot2c_f32_bf16", "v_writelane_b32"): self.rd |= R[0]
        elif op.startswith("ds_"):
            self.kind = "ds"
            if "read" in op or "bpermute" in op or "swizzle" in op:
                self.wr = R[0]; self.rd = set().union(*R[1:])
            else:
                self.rd = set().union(*R)
        elif op.startswith(("buffer_", "global_")):
            self.kind = "vmem"
            allm = mods.split()
            if op in ("buffer_wbl2", "buffer_inv"):
                pass
            elif "lds" in allm or "_lds_" in op:
                self.lds_dma = True; self.rd = set().union(*R) | {("s", "m0")}
            elif "load" in op:
                self.wr = R[0]; self.rd = set().union(*R[1:])
            elif "atomic" in op:
                self.rd = set().union(*R)
                if "sc0" in allm: self.wr = R[0]
            else:
                self.rd = set().union(*R)
                d = R[0] if op.startswith("buffer_") else R[1]
                if len(d) >= 3: self.store_data = d
        elif op.startswith("s_"):
            self.kind = "salu"
            if op.startswith(("s_cmp", "s_cbranch", "s_branch", "s_waitcnt", "s_barrier", "s_endpgm", "s_sleep", "s_setprio", "s_bitcmp")):
                self.rd = set().union(*R) if R else set()
            else:
                self.wr = R[0] if R else set(); self.rd = set().union(*R[1:]) if len(R) > 1 else set()
                if "saveexec" in op: self.wr |= {("s", "exec")}
        else:
            raise ValueError("unknown instruction " + txt)

VALU_KINDS = ("valu", "trans", "permlane", "readlane")
def need(p, c):
    n = 0
    vw = {r for r in p.wr if r[0] in "va"}
    sw = {r for r in p.wr if r[0] == "s"}
    if p.kind in VALU_KINDS:
        if c.kind == "mfma" and vw & c.rd: n = max(n, 2)
        if c.kind == "permlane" and vw & c.rd: n = max(n, 2)
        if c.kind == "readlane" and vw & c.rd: n = max(n, 1)
        if c.dpp and vw & c.rd: n = max(n, 2)
        if p.kind == "trans" and c.kind in VALU_KINDS + ("mfma",) and vw & c.rd: n = max(n, 1)
        if sw:
            if c.kind == "vmem" and sw & c.rd: n = max(n, 5)
            if c.kind in VALU_KINDS and sw & c.rd: n = max(n, 4 if c.kind == "readlane" else 2)
            if c.kind == "valu" and c.op.startswith("v_cndmask") and sw & c.rd: n = max(n, 2)
            if c.kind == "salu" and sw & c.rd: n = max(n, 1)
            if ("s", "exec") in sw and c.kind in ("mfma", "permlane", "readlane"): n = max(n, 4)
            if ("s", "exec") in sw and c.dpp: n = max(n, 5)
    if p.kind == "mfma":
        big = {4: 8, 8: 12}[p.passes]; ovl = {4: 6, 8: 10}[p.passes]; war = {4: 3, 8: 7}[p.passes]
        if c.kind == "mfma":
            ab = c.rd - c.srcC if not (c.srcC & (c.rd - c.srcC)) else c.rd
            if p.wr & (c.rd - c.srcC): n = max(n, big)
            if p.wr & c.srcC and not (p.wr == c.srcC and p.passes == c.passes): n = max(n, ovl)
            if p.wr & c.wr and not (p.wr == c.srcC): n = max(n, big)
        elif c.kind in VALU_KINDS:
            if p.wr & (c.rd | c.wr): n = max(n, big)
            if p.srcC & c.wr: n = max(n, war)
        elif c.kind in ("ds", "vmem"):
            if p.wr & (c.rd | c.wr): n = max(n, big)
            if p.srcC & c.wr: n = max(n, war)
    if p.kind == "vmem" and p.store_data:
        if p.store_data & c.wr: n = max(n, 2)
    if p.kind == "salu" and ("s", "m0") in p.wr and c.lds_dma: n = max(n, 1)
    return n

def pad_hazards(lines, window=14):
    out = []
    for l in lines:
        c = Ins(l)
        if c.kind not in ("label", "nop"):
            dist = 0; worst = 0
            for p in reversed(out):
                if dist >= window: break
                if p.kind not in ("label", "nop"):
                    worst = max(worst, need(p, c) - dist)
                dist += p.nop
            if worst > 0:
                out.append(Ins(f"s_nop {worst-1}"))
        out.append(c)
    return [i.txt for i in out]

def check_trace(lines, window=14):
    padded = pad_hazards(lines, window)
    assert len(padded) == len(lines), "hazard across a loop back edge"

def kernel_header(name):
    return f""".text
.globl {name}
.p2align 8
.type {name},@function
{name}:
"""

def kernel_desc(name, vgpr, agpr=0, sgpr=102, wgy=False):
    acc = (vgpr + 3) // 4 * 4
    if acc < 4: acc = 4
    nfv = acc + agpr if agpr else vgpr
    s = f""".section .rodata,"a"
.p2align 6
.amdhsa_kernel {name}
  .amdhsa_next_free_vgpr {nfv}
  .amdhsa_next_free_sgpr {sgpr}
  .amdhsa_accum_offset {acc}
  .amdhsa_group_segment_fixed_size 0
  .amdhsa_kernarg_size 80
  .amdhsa_user_sgpr_count 2
  .amdhsa_user_sgpr_kernarg_segment_ptr 1
  .amdhsa_system_sgpr_workgroup_id_x 1
"""
    if wgy:
        s += "  .amdhsa_system_sgpr_workgroup_id_y 1\n"
    s += "  .amdhsa_float_denorm_mode_32 3\n"
    s += ".end_amdhsa_kernel\n"
    return s

TARGET = '.amdgcn_target "amdgcn-amd-amdhsa--gfx950"\n'
```

```python
import re
from asmlib import check_trace, pad_hazards

class Loop:
    def __init__(self, NTB, NFB, NST, SK, R, L, XD, XS, LA, WR, U, BP,
                 x_ops, dma_ops, frag_ops, mfma, iter_ops=(), pre_issued=0, extra=None, cnt="s51"):
        self.__dict__.update(locals())
        assert NST % U == 0 and U % (R * SK) == 0 and U % XS == 0 and (U * NFB) % WR == 0
        assert XD < XS and LA < WR and BP % SK == 0 and U % BP == 0 and NST // U >= 1
        self.vm = []
        self.ds = []
        self.last_bar = None
        self.cur_s0 = 0

    def _vwait(self, tags):
        idx = [i for i, t in enumerate(self.vm) if t in tags]
        if not idx: return None
        return len(self.vm) - 1 - max(idx)

    def prologue_dma(self):
        out = []
        for u in range(self.L):
            m0, lds, post = self.dma_ops(u)
            out.append(m0); out += lds; out += post
            self.vm += [("D", u)] * len(lds)
        return out
    def prologue_x(self):
        out = []
        for s in range(self.XD):
            lds, post = self.x_ops(s)
            out += lds; out += post
            self.vm += [("X", s)] * len(lds)
        return out
    def prologue_mixed(self):
        out = []
        for i in range(max(self.L, self.XD)):
            if i < self.XD:
                lds, post = self.x_ops(i); out += lds + post; self.vm += [("X", i)] * len(lds)
            if i < self.L:
                m0, lds, post = self.dma_ops(i); out += [m0] + lds + post; self.vm += [("D", i)] * len(lds)
        return out
    def note_vm(self, n, tag=("other", 0)):
        self.vm += [tag] * n
    def start(self):
        out = []
        n = self._vwait({("D", u) for u in range(self.BP // self.SK)})
        out += [f"s_waitcnt vmcnt({n})", "s_barrier"]
        self.last_bar = -self.LA
        for gb in range(self.LA):
            s, j = divmod(gb, self.NFB)
            ops = self.frag_ops(s, j, gb % self.WR)
            out += ops; self.ds += [gb] * len(ops)
        return out

    def _body(self, s0):
        NTB, NFB, SK, R, L, XD, LA, WR, BP = self.NTB, self.NFB, self.SK, self.R, self.L, self.XD, self.LA, self.WR, self.BP
        out = []
        sched = {}
        self.cur_s0 = s0
        for su in range(self.U):
            s = s0 + su
            items = []
            xl, xpost = self.x_ops(s + XD)
            xi = [("X", s + XD, t) for t in xl]
            di = []
            if True:
                u = s // SK + L
                m0, dl, dpost = self.dma_ops(u)
                part = s % SK
                lo, hi = len(dl) * part // SK, len(dl) * (part + 1) // SK
                di = [("D", u, t) for t in dl[lo:hi]]
            seq = []
            a_, b_ = list(xi), list(di)
            while a_ or b_:
                if a_ and (not b_ or len(a_) >= len(b_)): seq.append(a_.pop(0))
                else: seq.append(b_.pop(0))
            n = len(seq)
            slots = NFB * NTB
            for i, it in enumerate(seq):
                pos = (i * slots + slots // 2) // n
                lst = sched.setdefault((s, pos), [])
                if it[0] == "D" and it[2] is dl[0]:
                    p2 = max(pos - 1, 0)
                    if p2 == pos: lst.append(("s", 0, m0)); lst.append(("s", 0, "s_nop 0"))
                    else: sched.setdefault((s, p2), []).append(("s", 0, m0))
                lst.append(it)
                post = []
                if it[0] == "X" and it[2] is xl[-1]: post = xpost
                if it[0] == "D" and it[2] is dl[-1]: post = dpost
                for t in post: sched.setdefault((s, min(pos + 1, slots - 1)), []).append(("s", 0, t))
            if self.extra:
                for pos, tag, t in self.extra(s, su): sched.setdefault((s, pos), []).append((tag, 0, t))
        for su in range(self.U):
            s = s0 + su
            for j in range(NFB):
                gb = s * NFB + j
                wv = None
                if j == 0:
                    wv = self._vwait({("X", s)})
                nxt = gb + LA
                bar = nxt % (NFB * BP) == 0
                if bar:
                    s1 = nxt // NFB
                    w2 = self._vwait({("D", u) for u in range(s1 // SK, (s1 + BP) // SK)})
                    wv = w2 if wv is None else min(wv, w2)
                idx = max(i for i, t in enumerate(self.ds) if t == gb)
                wl = len(self.ds) - 1 - idx
                assert wl <= 15 and (wv is None or wv <= 63), (wl, wv)
                if bar:
                    out.append(f"s_waitcnt vmcnt({wv})"); out.append("s_barrier"); out.append(f"s_waitcnt lgkmcnt({wl})")
                    self.last_bar = gb
                elif wv is not None:
                    out.append(f"s_waitcnt vmcnt({wv}) lgkmcnt({wl})")
                else:
                    out.append(f"s_waitcnt lgkmcnt({wl})")
                s2, j2 = divmod(nxt, NFB)
                fr = self.frag_ops(s2, j2, nxt % WR)
                for tb in range(NTB):
                    out.append(self.mfma(s, j, tb, gb % WR))
                    k = (len(fr) + (NTB - tb) - 1) // (NTB - tb)
                    oth = sched.get((s, j * NTB + tb), [])
                    if oth and tb < NTB - 1 and len(fr) <= NTB - tb - 1: k = 0
                    for _ in range(k):
                        out.append(fr.pop(0)); self.ds.append(nxt)
                    for tag, ss, t in oth:
                        out.append(t)
                        if tag == "D":
                            old_last = (ss - R + 1) * SK * NFB - 1
                            assert ss - R < 0 or old_last < self.last_bar, ("ring WAR", s, j, ss, self.last_bar)
                        if tag in ("D", "X", "V"): self.vm.append((tag, ss))
        return out

    def loop(self, label):
        n = self.NST // self.U
        bodies = [self._body(i * self.U) for i in range(min(n, 3))]
        b = bodies[0]
        for o in bodies[1:]:
            assert len(o) == len(b)
            for i, (x, y) in enumerate(zip(b, o)):
                if x != y:
                    px, py = re.findall(r"\d+", x), re.findall(r"\d+", y)
                    assert x.startswith("s_waitcnt") and re.sub(r"\d+", "", x) == re.sub(r"\d+", "", y), (x, y)
                    mins = iter([str(min(int(p), int(q))) for p, q in zip(px, py)])
                    b[i] = re.sub(r"\d+", lambda m: next(mins), x)
        if n == 1:
            return b
        tail = list(self.iter_ops) + [f"s_sub_u32 {self.cnt}, {self.cnt}, 1", f"s_cmp_lg_u32 {self.cnt}, 0"]
        mf = [i for i, x in enumerate(b) if x.startswith("v_mfma")]
        body = list(b)
        salu_scc = [i for i, x in enumerate(b) if x.startswith(("s_add", "s_sub"))]
        last_scc = max(salu_scc) if salu_scc else -1
        cand = [i for i in mf if i > last_scc]
        if len(cand) > len(tail) and not self.iter_ops:
            for k, t in enumerate(reversed(tail)):
                body.insert(cand[-1 - k - 1] + 1, t)
        else:
            body += tail
        body = pad_hazards(body)
        check_trace(body + [f"s_cbranch_scc1 {label}"] + body)
        return [f"s_mov_b32 {self.cnt}, {n}", f"{label}:"] + body + [f"s_cbranch_scc1 {label}"]
```

```python
import sys, math
from asmlib import *
from gemm import Loop

KNAME = "sequential_preLN__sliding_block__glu_gated_glu__prompt"
MB = 1 << 20
WS_XN, WS_QF, WS_KF, WS_VF, WS_OT, WS_HC = 0, 4*MB, 8*MB, 12*MB, 16*MB, 20*MB
WS_HH = 24*MB
WS_XM = 40*MB
WS_HM = WS_XM + 8192
WS_WB = WS_HM + 8192
WS_SSQ = WS_WB + 8192
WS_TM = 48*MB
SRD3 = "0x00020000"
LOG2E = 1.4426950408889634
def f2h(x):
    import struct
    return "0x%08x" % struct.unpack("<I", struct.pack("<f", x))[0]

class Gen:
    def __init__(self, timers=False):
        self.a = Asm()
        self.timers = timers
        self.nt = 0
    def entry(self, end):
        a = self.a
        a(f"""
        s_cmp_ge_u32 s2, 256
        s_cbranch_scc1 {end}
        s_load_dwordx16 s[4:19], s[0:1], 0
        s_load_dwordx4 s[20:23], s[0:1], 64
        v_lshrrev_b32 v3, 6, v0
        v_and_b32 v0, 63, v0
        v_readfirstlane_b32 s3, v3
        v_and_b32 v1, 15, v0
        v_lshrrev_b32 v2, 4, v0
        s_and_b32 s52, s2, 7
        s_lshr_b32 s53, s2, 3
        s_and_b32 s24, s52, 6
        s_and_b32 s54, s53, 1
        s_add_u32 s24, s24, s54
        s_and_b32 s54, s52, 1
        s_lshl_b32 s25, s54, 4
        s_lshr_b32 s55, s53, 1
        s_add_u32 s25, s25, s55
        s_lshl_b32 s26, s24, 1
        s_lshr_b32 s56, s53, 4
        s_add_u32 s26, s26, s56
        s_lshl_b32 s27, s54, 3
        s_and_b32 s55, s55, 7
        s_add_u32 s27, s27, s55
        """)
        self.stamp()
        a("s_waitcnt lgkmcnt(0)")
    def stamp(self):
        if self.timers:
            self.a(f"s_memtime s[{64+2*self.nt}:{65+2*self.nt}]")
            self.nt += 1
    def dump_timers(self, slot):
        if not self.timers: return
        a = self.a
        self.stamp()
        a(f"""
        s_waitcnt lgkmcnt(0)
        s_lshl_b32 s52, s2, 2
        s_add_u32 s52, s52, s3
        s_lshl_b32 s52, s52, 6
        s_add_u32 s52, s52, {WS_TM + slot*65536}
        s_add_u32 s40, s22, s52
        s_addc_u32 s41, s23, 0
        s_mov_b32 s42, 64
        s_mov_b32 s43, {SRD3}
        v_lshlrev_b32 v3, 6, v0
        """)
        for i in range(self.nt):
            a(f"v_mov_b32 v4, s{64+2*i}")
            a(f"buffer_store_dword v4, v3, s[40:43], 0 offen offset:{4*i}")
        self.nt = 0
    def srd(self, d, ptr, off, size):
        a = self.a
        if off == 0:
            a(f"s_mov_b32 s{d}, s{ptr}\ns_mov_b32 s{d+1}, s{ptr+1}")
        else:
            a(f"s_add_u32 s{d}, s{ptr}, {off}\ns_addc_u32 s{d+1}, s{ptr+1}, 0")
        a(f"s_mov_b32 s{d+2}, {size}\ns_mov_b32 s{d+3}, {SRD3}")
    def red16_32(self, v, t, op):
        a = self.a
        a(f"""
        v_mov_b32 v{t}, v{v}
        v_permlane16_swap_b32 v{t}, v{v}
        {op} v{v}, v{t}, v{v}
        v_mov_b32 v{t}, v{v}
        v_permlane32_swap_b32 v{t}, v{v}
        {op} v{v}, v{t}, v{v}
        """)

    def p0(self):
        a = self.a
        a("""
        s_lshl_b32 s52, s24, 5
        s_add_u32 s52, s52, s25
        s_lshl_b32 s53, s52, 14
        """)
        self.srd(28, 4, "s53", 16384)
        a("""
        v_and_b32 v3, 7, v0
        v_lshrrev_b32 v4, 3, v0
        s_lshl_b32 s54, s3, 9
        v_lshlrev_b32 v5, 11, v3
        v_lshl_add_u32 v5, v4, 4, v5
        v_add_u32 v5, s54, v5
        """)
        for i in range(4):
            a(f"buffer_load_dwordx4 v[{16+4*i}:{19+4*i}], v5, s[28:31], 0 offen offset:{128*i}")
        a("""
        s_lshl_b32 s53, s52, 2
        s_add_u32 s57, s53, s3
        s_lshl_b32 s53, s57, 11
        """)
        self.srd(32, 8, "s53", 2048)
        a("""
        v_lshlrev_b32 v6, 4, v0
        buffer_load_dwordx4 v[32:35], v6, s[32:35], 0 offen
        buffer_load_dwordx4 v[36:39], v6, s[32:35], 0 offen offset:1024
        """)
        a(f"""
        s_lshr_b32 s53, s52, 2
        s_lshl_b32 s53, s53, 16
        s_and_b32 s54, s52, 3
        s_lshl_b32 s54, s54, 7
        s_add_u32 s53, s53, s54
        s_add_u32 s53, s53, {WS_XN}
        s_sub_u32 s54, 65536, s54
        """)
        self.srd(36, 22, "s53", "s54")
        a(f"""
        s_lshl_b32 s53, s52, 5
        s_add_u32 s53, s53, {WS_XM}
        """)
        self.srd(40, 22, "s53", 32)
        a(f"""
        s_lshl_b32 s53, s57, 1
        s_add_u32 s53, s53, {WS_WB}
        """)
        self.srd(44, 22, "s53", 2052)
        a("""
        s_lshl_b32 s54, s3, 14
        v_lshlrev_b32 v7, 9, v4
        v_lshl_add_u32 v7, v3, 4, v7
        v_add_u32 v7, s54, v7
        s_lshl_b32 s54, s3, 2
        v_lshlrev_b32 v8, 4, v3
        v_add_u32 v9, s54, v8
        s_mov_b32 s53, 4096
        s_mov_b32 s54, 8192
        s_mov_b32 s55, 12288
        s_waitcnt vmcnt(2)
        """)
        for i in range(16):
            a(f"v_lshlrev_b32 v{48+2*i}, 16, v{16+i}")
            a(f"v_and_b32 v{49+2*i}, 0xffff0000, v{16+i}")
        for i in range(8): a(f"v_add_f32 v{16+i}, v{48+i}, v{56+i}")
        for i in range(8): a(f"v_add_f32 v{24+i}, v{64+i}, v{72+i}")
        for i in range(8): a(f"v_add_f32 v{16+i}, v{16+i}, v{24+i}")
        for n in (4, 2, 1):
            for i in range(n): a(f"v_add_f32 v{16+i}, v{16+i}, v{16+n+i}")
        a("v_add_f32_dpp v16, v16, v16 row_ror:8 row_mask:0xf bank_mask:0xf")
        self.red16_32(16, 17, "v_add_f32")
        a("""
        ds_write_b32 v9, v16
        s_waitcnt vmcnt(0)
        """)
        for i in range(8):
            a(f"v_lshlrev_b32 v{80+2*i}, 16, v{32+i}")
            a(f"v_and_b32 v{81+2*i}, 0xffff0000, v{32+i}")
        for n in (8, 4, 2, 1):
            for i in range(n): a(f"v_add_f32 v{80+i}, v{80+i}, v{80+n+i}")
        a("""
        s_waitcnt lgkmcnt(0)
        s_barrier
        ds_read_b128 v[20:23], v8
        v_add_f32_dpp v80, v80, v80 quad_perm:[1,0,3,2] row_mask:0xf bank_mask:0xf
        v_add_f32_dpp v80, v80, v80 quad_perm:[2,3,0,1] row_mask:0xf bank_mask:0xf
        v_add_f32_dpp v80, v80, v80 row_half_mirror row_mask:0xf bank_mask:0xf
        v_add_f32_dpp v80, v80, v80 row_mirror row_mask:0xf bank_mask:0xf
        """)
        self.red16_32(80, 81, "v_add_f32")
        a(f"""
        v_mul_f32 v80, {f2h(1/1024)}, v80
        v_cvt_pk_bf16_f32 v81, v80, v80
        v_lshlrev_b32 v82, 16, v81
        v_sub_f32 v82, v80, v82
        v_cvt_pk_bf16_f32 v82, v82, v82
        v_lshlrev_b32 v83, 12, v0
        buffer_store_short v81, v83, s[44:47], 0 offen
        buffer_store_short v82, v83, s[44:47], 0 offen offset:2048
        s_waitcnt lgkmcnt(0)
        v_add_f32 v20, v20, v21
        v_add_f32 v22, v22, v23
        v_add_f32 v20, v20, v22
        v_mul_f32 v20, {f2h(1/1024)}, v20
        """)
        for i in range(32): a(f"v_sub_f32 v{48+i}, v{48+i}, v20")
        for i in range(4): a(f"v_mul_f32 v{16+i}, v{48+i}, v{48+i}")
        for i in range(4, 32): a(f"v_fmac_f32 v{16+i%4}, v{48+i}, v{48+i}")
        a("""
        v_add_f32 v16, v16, v17
        v_add_f32 v18, v18, v19
        v_add_f32 v16, v16, v18
        v_add_f32_dpp v16, v16, v16 row_ror:8 row_mask:0xf bank_mask:0xf
        """)
        self.red16_32(16, 17, "v_add_f32")
        a(f"""
        ds_write_b32 v9, v16 offset:128
        v_lshlrev_b32 v10, 2, v0
        s_cmp_lg_u32 s3, 0
        s_cbranch_scc1 P0_nomean
        buffer_store_dword v20, v10, s[40:43], 0 offen
        P0_nomean:
        s_waitcnt lgkmcnt(0)
        s_barrier
        ds_read_b128 v[24:27], v8 offset:128
        v_mov_b32 v28, {f2h(1e-5)}
        s_waitcnt lgkmcnt(0)
        v_add_f32 v24, v24, v25
        v_add_f32 v26, v26, v27
        v_add_f32 v24, v24, v26
        v_fmac_f32 v28, {f2h(1/1024)}, v24
        v_rsq_f32 v28, v28
        """)
        for i in range(32): a(f"v_mul_f32 v{48+i}, v{48+i}, v28")
        for i in range(16): a(f"v_cvt_pk_bf16_f32 v{32+i}, v{48+2*i}, v{49+2*i}")
        for i, so in enumerate(["0", "s53", "s54", "s55"]):
            a(f"buffer_store_dwordx4 v[{32+4*i}:{35+4*i}], v7, s[36:39], {so} offen")

    def x_setup(self, ws_off, blk_sgpr_expr, nblk, blkbytes):
        a = self.a
        a(blk_sgpr_expr)
        a(f"s_mul_i32 s52, s52, {blkbytes}\ns_add_u32 s52, s52, {ws_off}")
        self.srd(36, 22, "s52", nblk * blkbytes)
        a("v_lshlrev_b32 v3, 9, v2\nv_lshl_add_u32 v3, v1, 4, v3\ns_mov_b32 s50, 0")
        if nblk == 2: a(f"v_add_u32 v4, {blkbytes}, v3")
    def x_ops_fn(self, NTB, AX, XS):
        def x_ops(s):
            st = AX + (s % XS) * 4 * NTB
            l = [f"buffer_load_dwordx4 a[{st+4*tb}:{st+4*tb+3}], v{3 + tb//2}, s[36:39], s50 offen offset:{256*(tb&1)}" for tb in range(NTB)]
            return l, ["s_add_u32 s50, s50, 2048"]
        return x_ops

    def p1(self):
        a = self.a
        NTB, NFB, R, XS, WR = 4, 6, 4, 4, 6
        US = 12288
        ACC = 32; AX = 0; AW = XS * 16
        a("s_lshl_b32 s52, s25, 6\ns_sub_u32 s53, 0x600000, s52")
        self.srd(28, 6, "s52", "s53")
        a("s_mul_i32 s53, s3, 98304\ns_mul_i32 s48, s3, 3072\ns_mov_b32 s49, 0")
        for i in range(3):
            a(f"""
            v_add_u32 v10, {64*i}, v0
            v_mul_u32_u24 v11, 5462, v10
            v_lshrrev_b32 v11, 16, v11
            v_mul_u32_u24 v12, 12, v11
            v_sub_u32 v12, v10, v12
            v_lshrrev_b32 v13, 2, v11
            v_and_b32 v13, 2, v13
            v_xor_b32 v12, v12, v13
            v_lshrrev_b32 v13, 2, v12
            v_and_b32 v12, 3, v12
            v_mul_u32_u24 v{5+i}, 6144, v11
            v_lshl_add_u32 v{5+i}, v13, 11, v{5+i}
            v_lshl_add_u32 v{5+i}, v12, 4, v{5+i}
            v_add_u32 v{5+i}, s53, v{5+i}
            """)
            if i: a(f"v_subrev_u32 v{5+i}, {1024*i}, v{5+i}")
        self.x_setup(WS_XN, "s_lshl_b32 s52, s24, 2\ns_add_u32 s52, s52, s3\ns_lshl_b32 s52, s52, 1", 2, 65536)
        a("""
        v_mul_u32_u24 v8, 1536, v2
        v_lshrrev_b32 v10, 2, v1
        v_mul_u32_u24 v10, 192, v10
        v_add_u32 v8, v8, v10
        v_and_b32 v10, 3, v0
        v_lshl_add_u32 v8, v10, 3, v8
        v_and_b32 v10, 1, v2
        v_lshlrev_b32 v10, 5, v10
        v_sub_u32 v9, v8, v10
        v_add_u32 v8, v8, v10
        """)
        def dma_ops(u):
            return (f"s_add_u32 m0, s48, {(u % R) * US}",
                    [f"buffer_load_dwordx4 v{5+i}, s[28:31], s49 offen offset:{1024*i} lds" for i in range(3)],
                    [f"s_add_u32 s49, s49, {64*6144}"])
        def frag_ops(s, j, slot):
            off = ((s // 2) % R) * US + (s % 2) * 6144 + 32 * j
            r = AW + 4 * slot
            return [f"ds_read_b64_tr_b16 a[{r}:{r+1}], v{8 + (j & 1)} offset:{off}",
                    f"ds_read_b64_tr_b16 a[{r+2}:{r+3}], v{8 + (j & 1)} offset:{off+768}"]
        def mfma(s, j, tb, slot):
            d = ACC + (j * NTB + tb) * 4
            w = f"a[{AW+4*slot}:{AW+4*slot+3}]"; xr = AX + (s % XS) * 16 + 4 * tb; x = f"a[{xr}:{xr+3}]"
            if j >= 4: w, x = x, w
            return f"v_mfma_f32_16x16x32_bf16 v[{d}:{d+3}], {w}, {x}, v[{d}:{d+3}]"
        lp = Loop(NTB, NFB, 32, 2, R, 2, 3, XS, 4, WR, 8, 2, self.x_ops_fn(NTB, AX, XS), dma_ops, frag_ops, mfma)
        for x in lp.prologue_mixed(): a(x)
        for r in range(NTB * NFB * 4): a(f"v_mov_b32 v{ACC+r}, 0")
        a(f"""
        s_lshl_b32 s52, s25, 17
        s_lshl_b32 s53, s24, 14
        s_add_u32 s52, s52, s53
        s_lshl_b32 s53, s3, 12
        s_add_u32 s52, s52, s53
        s_add_u32 s52, s52, {WS_QF}
        """)
        self.srd(40, 22, "s52", 8 * MB + 4096)
        a(f"s_mov_b32 s53, {4*MB}\ns_mov_b32 s54, {8*MB}\nv_lshlrev_b32 v10, 4, v0")
        for x in lp.start(): a(x)
        self.stamp()
        for x in lp.loop("P1_loop"): a(x)
        self.stamp()
        c = 32 ** -0.5 * LOG2E
        T = 128
        acc = lambda j, tb, r: ACC + (j * NTB + tb) * 4 + r
        n = 0
        for tb in range(4):
            t = T + 4 * (n % 8); n += 1
            for h in range(2):
                for p in range(2): a(f"v_cvt_pk_bf16_f32 v{t+2*h+p}, v{acc(2+h,tb,2*p)}, v{acc(2+h,tb,2*p+1)}")
            a(f"buffer_store_dwordx4 v[{t}:{t+3}], v10, s[40:43], s53 offen offset:{1024*tb}")
        for pr in range(2):
            for db in range(2):
                t = T + 4 * (n % 8); n += 1
                for h in range(2):
                    for p in range(2): a(f"v_cvt_pk_bf16_f32 v{t+2*h+p}, v{acc(4+db,2*pr+h,2*p)}, v{acc(4+db,2*pr+h,2*p+1)}")
                a(f"buffer_store_dwordx4 v[{t}:{t+3}], v10, s[40:43], s54 offen offset:{2048*pr+1024*db}")
        for tb in range(4):
            t = T + 4 * (n % 8); n += 1
            for h in range(2):
                for r in range(4): a(f"v_mul_f32 v{acc(h,tb,r)}, {f2h(c)}, v{acc(h,tb,r)}")
                for p in range(2): a(f"v_cvt_pk_bf16_f32 v{t+2*h+p}, v{acc(h,tb,2*p)}, v{acc(h,tb,2*p+1)}")
            a(f"buffer_store_dwordx4 v[{t}:{t+3}], v10, s[40:43], 0 offen offset:{1024*tb}")

    def p2(self):
        a = self.a
        NB = "0xf149f2ca"
        a(f"s_lshl_b32 s52, s25, 17\ns_add_u32 s53, s52, {WS_KF}")
        self.srd(28, 22, "s53", 131072)
        a(f"s_add_u32 s53, s52, {WS_VF}")
        self.srd(32, 22, "s53", 131072)
        a(f"""
        s_lshl_b32 s53, s24, 14
        s_add_u32 s52, s52, s53
        s_lshl_b32 s54, s3, 12
        s_add_u32 s52, s52, s54
        s_add_u32 s52, s52, {WS_QF}
        """)
        self.srd(36, 22, "s52", 4096)
        a(f"""
        v_lshlrev_b32 v4, 4, v0
        s_lshl_b32 s54, s3, 13
        s_add_u32 s53, s53, s54
        s_sub_u32 s53, s53, 16384
        s_cselect_b32 s53, 0x7f000000, s53
        v_add_u32 v3, s53, v4
        s_mov_b32 s55, 4096
        """)
        for tb in range(4):
            a(f"buffer_load_dwordx4 v[{16+4*tb}:{19+4*tb}], v4, s[36:39], 0 offen offset:{1024*tb}")
        for srd, lb in (("s[28:31]", 0), ("s[32:35]", 32768)):
            for hf in range(2):
                a(f"s_add_u32 m0, s54, {lb + 4096*hf}")
                for i in range(4):
                    a(f"buffer_load_dwordx4 v3, {srd}, {'s55' if hf else '0'} offen offset:{1024*i} lds")
        a(f"""
        s_lshl_b32 s52, s24, 2
        s_add_u32 s52, s52, s3
        s_lshl_b32 s52, s52, 17
        s_lshl_b32 s53, s25, 11
        s_add_u32 s52, s52, s53
        s_add_u32 s52, s52, {WS_OT}
        """)
        self.srd(40, 22, "s52", 65536 + 2048)
        a(f"""
        s_mov_b32 s55, 65536
        s_lshl_b32 s54, s3, 12
        v_add_u32 v5, s54, v4
        v_mov_b32 v6, {NB}
        v_lshlrev_b32 v7, 2, v2
        """)
        DM, ER, EP, CQ = 32, 8, 36, 40
        for r in range(4):
            a(f"""
            v_add_u32 v12, {r}, v7
            v_cmp_gt_u32 vcc, v12, v1
            v_cndmask_b32 v{DM+r}, 0, v6, vcc
            v_cndmask_b32 v{ER+r}, v6, 0, vcc
            """.replace(f"v_cndmask_b32 v{ER+r}, v6, 0, vcc", f"v_cndmask_b32_e64 v{ER+r}, v6, 0, vcc"))
        for r in range(4): a(f"v_mov_b32 v12, 0x3f803f80\nv_accvgpr_write_b32 a{144+r}, v12")
        O, S, PZA, PZB = 72, 96, 232, 236
        for r in (PZA + 2, PZA + 3, PZB, PZB + 1): a(f"v_mov_b32 v{r}, 0")
        a("s_waitcnt vmcnt(0)\ns_barrier")
        self.stamp()
        Sreg = lambda qb, p: S + 68 * qb + 4 * (p - qb)
        for rd in range(2):
            a(f"s_lshl_b32 s52, s24, 3\ns_lshl_b32 s53, s3, 1\ns_add_u32 s52, s52, s53\ns_add_u32 s52, s52, {rd}")
            nds = 0
            pend = []
            kq = [f"ds_read_b128 a[{4*p}:{4*p+3}], v5 offset:{rd*2048 + 1024*p}" for p in range(18)]
            vq = [f"ds_read_b128 a[{72+4*i}:{75+4*i}], v5 offset:{32768 + rd*2048 + 1024*i}" for i in range(18)]
            for x in kq[:8]: a(x)
            for p in range(8):
                a(f"s_cmp_lt_u32 s52, {8-p}\ns_cselect_b32 s53, {NB}, 0")
                for r in range(4): a(f"v_mov_b32 v{CQ+4*p+r}, s53")
            for r in range(4): a(f"v_add_f32 v{EP+r}, v{ER+r}, v{CQ}")
            issued = 8
            q = [f"v[{16+8*rd+4*qb}:{19+8*rd+4*qb}]" for qb in range(2)]
            rest = kq[8:] + vq
            M = [12, 13]
            mx = {0: [], 1: []}
            def max_ops(qb, p):
                s = Sreg(qb, p)
                if p == qb: return [f"v_max3_f32 v{M[qb]}, v{s}, v{s+1}, v{s+2}", f"v_max_f32 v{M[qb]}, v{M[qb]}, v{s+3}"]
                return [f"v_max3_f32 v{M[qb]}, v{M[qb]}, v{s}, v{s+1}", f"v_max3_f32 v{M[qb]}, v{M[qb]}, v{s+2}, v{s+3}"]
            todo = []
            for p in range(18):
                a(f"s_waitcnt lgkmcnt({min(15, issued - p - 1)})")
                for qb in range(2):
                    if (qb == 0 and p == 17) or (qb == 1 and p == 0): continue
                    if p == qb: c = f"v[{EP}:{EP+3}]"
                    elif p == 16 + qb: c = f"v[{DM}:{DM+3}]"
                    elif p >= 16: c = "0"
                    else: c = f"v[{CQ+4*(p//2)}:{CQ+4*(p//2)+3}]"
                    s = Sreg(qb, p)
                    a(f"v_mfma_f32_16x16x32_bf16 v[{s}:{s+3}], a[{4*p}:{4*p+3}], {q[qb]}, {c}")
                    todo.append((qb, p))
                    if rest and issued - p - 1 < 13:
                        a(rest.pop(0)); issued += 1
                    if len(todo) > 5:
                        for x in max_ops(*todo.pop(0)): a(x)
            for t in todo:
                for x in max_ops(*t): a(x)
            if rest: a("s_waitcnt lgkmcnt(6)")
            assert len(rest) <= 8
            for x in rest: a(x)
            for qb in range(2): self.red16_32(M[qb], 14 + qb, "v_max_f32")
            Oreg = lambda qb, k: O + 12 * qb + 4 * k
            first = True
            for P in range(9):
                for qb in range(2):
                    blocks = [p for p in (2 * P, 2 * P + 1) if qb <= p <= 16 + qb]
                    regs = [Sreg(qb, p) + r for p in blocks for r in range(4)]
                    for r in regs: a(f"v_sub_f32 v{r}, v{r}, v{M[qb]}")
                    for r in regs: a(f"v_exp_f32 v{r}, v{r}")
                    if len(blocks) == 2: dst = regs[0]; pq = dst
                    elif qb == 0: dst = PZA; pq = PZA
                    else: dst = PZB + 2; pq = PZB
                    for i in range(len(regs) // 2): a(f"v_cvt_pk_bf16_f32 v{dst+i}, v{regs[2*i]}, v{regs[2*i+1]}")
                    if first: a("s_waitcnt lgkmcnt(0)"); first = False
                    for k in range(3):
                        A = f"a[{72+4*(2*P+k)}:{75+4*(2*P+k)}]" if k < 2 else "a[144:147]"
                        o = Oreg(qb, k)
                        a(f"v_mfma_f32_16x16x32_bf16 v[{o}:{o+3}], {A}, v[{pq}:{pq+3}], {'0' if P == 0 else f'v[{o}:{o+3}]'}")
            for qb in range(2): a(f"v_rcp_f32 v{M[qb]}, v{Oreg(qb,2)}")
            for db in range(2):
                t = S + 4 * db
                for qb in range(2):
                    o = Oreg(qb, db)
                    for r in range(4): a(f"v_mul_f32 v{o+r}, v{o+r}, v{M[qb]}")
                    for p in range(2): a(f"v_cvt_pk_bf16_f32 v{t+2*qb+p}, v{o+2*p}, v{o+2*p+1}")
                a(f"v_permlane16_swap_b32 v{t}, v{t+2}\nv_permlane16_swap_b32 v{t+1}, v{t+3}")
                a(f"buffer_store_dwordx4 v[{t}:{t+3}], v4, s[40:43], {'s55' if rd else '0'} offen offset:{1024*db}")

    def w64_setup(self, ptr, rows):
        a = self.a
        a(f"s_lshl_b32 s52, s27, 7\ns_sub_u32 s53, {rows*2048}, s52")
        self.srd(28, ptr, "s52", "s53")
        a("""
        v_lshrrev_b32 v10, 3, v0
        v_and_b32 v11, 7, v0
        v_and_b32 v12, 2, v10
        s_and_b32 s52, s3, 1
        s_lshl_b32 s52, s52, 2
        v_or_b32 v12, s52, v12
        v_xor_b32 v11, v11, v12
        s_lshl_b32 s52, s3, 14
        v_lshlrev_b32 v4, 11, v10
        v_lshl_add_u32 v4, v11, 4, v4
        v_add_u32 v4, s52, v4
        s_lshl_b32 s48, s3, 10
        s_mov_b32 s49, 0
        v_lshrrev_b32 v10, 2, v1
        v_lshl_add_u32 v10, v2, 3, v10
        v_lshlrev_b32 v10, 7, v10
        v_and_b32 v11, 3, v0
        v_lshl_add_u32 v10, v11, 3, v10
        v_lshrrev_b32 v11, 3, v1
        v_and_b32 v12, 1, v2
        v_lshl_add_u32 v11, v12, 1, v11
        """)
        for j in range(4):
            a(f"v_xor_b32 v12, {j}, v11\nv_lshl_add_u32 v{5+j}, v12, 5, v10")
    def w64_dma(self, R):
        def dma_ops(u):
            return (f"s_add_u32 m0, s48, {(u % R) * 4096}",
                    ["buffer_load_dwordx4 v4, s[28:31], s49 offen lds"], ["s_add_u32 s49, s49, 65536"])
        return dma_ops
    def rstd_loads(self, tok_expr, ntb, dst, voff):
        a = self.a
        a(tok_expr)
        a(f"s_lshl_b32 s52, s52, 2\ns_sub_u32 s53, 131072, s52\ns_add_u32 s52, s52, {WS_SSQ}")
        self.srd(44, 22, "s52", "s53")
        a(f"""
        v_lshlrev_b32 v{voff}, 15, v2
        v_lshl_add_u32 v{voff}, v1, 2, v{voff}
        s_mov_b32 s53, 8192
        s_mov_b32 s54, 16384
        s_mov_b32 s55, 24576
        """)
        for tb in range(ntb):
            for i, so in enumerate(["0", "s53", "s54", "s55"]):
                a(f"buffer_load_dword v{dst+4*tb+i}, v{voff}, s[44:47], {so} offen offset:{64*tb}")
        return 4 * ntb
    def rstd_finish(self, ntb, src, dst, tmp, scale=None):
        a = self.a
        for tb in range(ntb):
            s = src + 4 * tb
            a(f"v_add_f32 v{s}, v{s}, v{s+1}\nv_add_f32 v{s+2}, v{s+2}, v{s+3}\nv_add_f32 v{s}, v{s}, v{s+2}")
            self.red16_32(s, tmp, "v_add_f32")
            a(f"v_mov_b32 v{dst+tb}, {f2h(1e-5)}\nv_fmac_f32 v{dst+tb}, {f2h(1/1024)}, v{s}\nv_rsq_f32 v{dst+tb}, v{dst+tb}")
            if scale is not None: a(f"v_mul_f32 v{dst+tb}, {f2h(scale)}, v{dst+tb}")

    def p3(self):
        a = self.a
        NTB, NFB, R, XS, WR = 2, 5, 16, 8, 8
        ACC = 32; AX = 0; AW = XS * 8; LB = 65536
        self.w64_setup(8, 1024)
        self.x_setup(WS_OT, "s_lshl_b32 s52, s26, 2\ns_add_u32 s52, s52, s3", 1, 65536)
        def frag_ops(s, j, slot):
            r = AW + 4 * slot
            if j == 4: return [f"ds_read_b128 a[{r}:{r+3}], v9 offset:{(s - lp.cur_s0) * 64}"]
            off = (s % R) * 4096
            return [f"ds_read_b64_tr_b16 a[{r}:{r+1}], v{5+j} offset:{off}",
                    f"ds_read_b64_tr_b16 a[{r+2}:{r+3}], v{5+j} offset:{off+512}"]
        def mfma(s, j, tb, slot):
            d = ACC + (j * NTB + tb) * 4; xr = AX + (s % XS) * 8 + 4 * tb
            return f"v_mfma_f32_16x16x32_bf16 v[{d}:{d+3}], a[{AW+4*slot}:{AW+4*slot+3}], a[{xr}:{xr+3}], v[{d}:{d+3}]"
        lp = Loop(NTB, NFB, 32, 1, R, 8, 6, XS, 6, WR, 16, 4, self.x_ops_fn(NTB, AX, XS), self.w64_dma(R), frag_ops, mfma,
                  iter_ops=["v_add_u32 v9, 1024, v9"])
        a("""
        s_lshl_b32 s56, s26, 2
        s_add_u32 s56, s56, s3
        s_lshl_b32 s52, s56, 16
        s_lshl_b32 s53, s27, 7
        s_add_u32 s52, s52, s53
        s_sub_u32 s53, 65536, s53
        """)
        self.srd(40, 4, "s52", "s53")
        a(f"s_lshl_b32 s52, s56, 7\ns_add_u32 s52, s52, {WS_XM}")
        self.srd(44, 22, "s52", 128)
        self.srd(32, 22, WS_WB, 4096)
        a(f"""
        v_lshlrev_b32 v10, 11, v1
        v_lshl_add_u32 v10, v2, 3, v10
        v_lshlrev_b32 v11, 2, v1
        s_mov_b32 s53, 32768
        s_lshl_b32 s52, s3, 10
        v_lshlrev_b32 v14, 4, v0
        v_add_u32 v12, s52, v14
        s_lshr_b32 s54, s3, 1
        s_lshl_b32 s54, s54, 7
        s_add_u32 s52, s52, s54
        s_add_u32 m0, s52, {LB}
        v_and_b32 v9, 1, v0
        v_mul_u32_u24 v9, 2176, v9
        v_lshl_add_u32 v9, v2, 4, v9
        v_add_u32 v9, {LB}, v9
        buffer_load_dwordx4 v12, s[32:35], 0 offen lds
        """)
        XR = 72
        for j in range(4):
            for tb in range(2):
                r = XR + 2 * (j * 2 + tb)
                a(f"buffer_load_dwordx2 v[{r}:{r+1}], v10, s[40:43], {'s53' if tb else '0'} offen offset:{32*j}")
        a("buffer_load_dword v24, v11, s[44:47], 0 offen\nbuffer_load_dword v25, v11, s[44:47], 0 offen offset:64")
        lp.note_vm(11, ("init", 0))
        for x in lp.prologue_mixed(): a(x)
        for r in range(8): a(f"v_mov_b32 v{ACC+32+r}, 0")
        a(f"s_lshl_b32 s52, s56, 16\ns_lshl_b32 s53, s27, 12\ns_add_u32 s52, s52, s53\ns_add_u32 s52, s52, {WS_HC}")
        self.srd(40, 22, "s52", 4096)
        a(f"s_lshl_b32 s52, s56, 7\ns_lshl_b32 s53, s27, 13\ns_add_u32 s53, s52, s53\ns_add_u32 s53, s53, {WS_SSQ}")
        self.srd(44, 22, "s53", 128)
        a(f"s_add_u32 s52, s52, {WS_HM}\ns_cmp_eq_u32 s27, 0\ns_cselect_b32 s53, 128, 0")
        self.srd(32, 22, "s52", "s53")
        a(f"s_waitcnt vmcnt({lp._vwait({('init', 0)})})")
        for i in range(8):
            for p in range(2):
                a(f"v_lshlrev_b32 v{ACC+4*i+2*p}, 16, v{XR+2*i+p}\nv_and_b32 v{ACC+4*i+2*p+1}, 0xffff0000, v{XR+2*i+p}")
        for x in lp.start(): a(x)
        self.stamp()
        for x in lp.loop("P3_loop"): a(x)
        self.stamp()
        acc = lambda j, tb, r: ACC + (j * NTB + tb) * 4 + r
        for tb in range(2):
            a(f"v_add_f32 v{24+tb}, v{24+tb}, v{acc(4,tb,0)}\nv_add_f32 v{24+tb}, v{24+tb}, v{acc(4,tb,1)}")
        for j in range(4):
            t = 72 + 4 * j
            for tb in range(2):
                for r in range(4): a(f"v_sub_f32 v{acc(j,tb,r)}, v{acc(j,tb,r)}, v{24+tb}")
                for p in range(2): a(f"v_cvt_pk_bf16_f32 v{t+2*tb+p}, v{acc(j,tb,2*p)}, v{acc(j,tb,2*p+1)}")
            a(f"v_permlane16_swap_b32 v{t}, v{t+2}\nv_permlane16_swap_b32 v{t+1}, v{t+3}")
            a(f"buffer_store_dwordx4 v[{t}:{t+3}], v14, s[40:43], 0 offen offset:{1024*j}")
        for tb in range(2):
            for j in range(4):
                for r in range(4):
                    x = acc(j, tb, r)
                    a(f"v_mul_f32 v{26+tb}, v{x}, v{x}" if j == 0 and r == 0 else f"v_fmac_f32 v{26+tb}, v{x}, v{x}")
            self.red16_32(26 + tb, 28, "v_add_f32")
        a("""
        v_and_b32 v28, 1, v2
        v_cmp_eq_u32 vcc, 1, v28
        v_cndmask_b32 v26, v26, v27, vcc
        v_cndmask_b32 v24, v24, v25, vcc
        v_lshlrev_b32 v28, 2, v0
        buffer_store_dword v26, v28, s[44:47], 0 offen
        buffer_store_dword v24, v28, s[32:35], 0 offen
        """)

    def p4(self, R=4, L=2, XD=2, U=4, BP=1):
        a = self.a
        NTB, NFB, XS, WR = 4, 14, 4, 4
        SS = 16896; ACC = 32; AX = 0; AW = 64
        nbase = (R + 2) // 3
        a(f"s_mul_i32 s52, s25, 224\ns_sub_u32 s53, {1024*7168}, s52")
        self.srd(28, 12, "s52", "s53")
        a("""
        s_add_u32 s32, s14, s52
        s_addc_u32 s33, s15, 0
        s_sub_u32 s32, s32, 2048
        s_subb_u32 s33, s33, 0
        s_add_u32 s34, s53, 2048
        s_mov_b32 s35, 0x00020000
        s_mul_i32 s52, s3, 57344
        """)
        for i in range(2):
            a(f"""
            v_add_u32 v10, {64*i}, v0
            v_mul_u32_u24 v11, 4682, v10
            v_lshrrev_b32 v11, 16, v11
            v_mul_u32_u24 v12, 14, v11
            v_sub_u32 v12, v10, v12
            v_mul_u32_u24 v{5+i}, 7168, v11
            v_lshl_add_u32 v{5+i}, v12, 4, v{5+i}
            v_add_u32 v{5+i}, s52, v{5+i}
            """)
        a("""
        v_subrev_u32 v6, 1024, v6
        v_mov_b32 v10, 0x7f000000
        v_cmp_gt_u32 vcc, 48, v0
        v_cndmask_b32 v6, v10, v6, vcc
        s_mul_i32 s48, s3, 4224
        s_mov_b32 s49, 0
        """)
        self.x_setup(WS_HC, "s_lshl_b32 s52, s24, 2\ns_add_u32 s52, s52, s3\ns_lshl_b32 s52, s52, 1", 2, 65536)
        a("""
        v_mul_u32_u24 v7, 4224, v2
        v_lshrrev_b32 v10, 2, v1
        v_mul_u32_u24 v10, 224, v10
        v_add_u32 v7, v7, v10
        v_and_b32 v10, 3, v0
        v_lshl_add_u32 v7, v10, 3, v7
        """)
        for b in range(1, nbase): a(f"v_add_u32 v{7+b}, {3*SS*b}, v7")
        def dma_ops(u):
            return (f"s_add_u32 m0, s48, {(u % R) * SS}",
                    ["buffer_load_dwordx4 v5, s[28:31], s49 offen lds",
                     "buffer_load_dwordx4 v6, s[28:31], s49 offen offset:1024 lds",
                     "buffer_load_dwordx4 v5, s[32:35], s49 offen offset:2048 lds",
                     "buffer_load_dwordx4 v6, s[32:35], s49 offen offset:3072 lds"],
                    [f"s_add_u32 s49, s49, {32*7168}"])
        def frag_ops(s, j, slot):
            sl = s % R; mt, jj = divmod(j, 7); r = AW + 4 * slot
            off = (sl % 3) * SS + mt * 2048 + jj * 32
            return [f"ds_read_b64_tr_b16 a[{r}:{r+1}], v{7 + sl//3} offset:{off}",
                    f"ds_read_b64_tr_b16 a[{r+2}:{r+3}], v{7 + sl//3} offset:{off+896}"]
        def mfma(s, j, tb, slot):
            d = ACC + (j * NTB + tb) * 4; xr = AX + (s % XS) * 16 + 4 * tb
            return f"v_mfma_f32_16x16x32_bf16 v[{d}:{d+3}], a[{AW+4*slot}:{AW+4*slot+3}], a[{xr}:{xr+3}], v[{d}:{d+3}]"
        lp = Loop(NTB, NFB, 32, 1, R, L, XD, XS, 3, WR, U, BP, self.x_ops_fn(NTB, AX, XS), dma_ops, frag_ops, mfma)
        n = self.rstd_loads("s_lshl_b32 s52, s24, 2\ns_add_u32 s52, s52, s3\ns_lshl_b32 s52, s52, 6", 4, 14, 30)
        lp.note_vm(n, ("init", 0))
        for x in lp.prologue_mixed(): a(x)
        for r in range(224): a(f"v_mov_b32 v{ACC+r}, 0")
        a(f"""
        s_lshl_b32 s52, s24, 2
        s_add_u32 s52, s52, s3
        s_mul_i32 s52, s52, {2*229376}
        s_mul_i32 s53, s25, 7168
        s_add_u32 s52, s52, s53
        s_add_u32 s52, s52, {WS_HH}
        """)
        self.srd(40, 22, "s52", 229376 + 7168)
        a(f"s_waitcnt vmcnt({lp._vwait({('init', 0)})})")
        self.rstd_finish(4, 14, 10, 30, scale=-LOG2E)
        a(f"v_lshlrev_b32 v14, 4, v0\ns_mov_b32 s53, 4096\ns_mov_b32 s54, 229376\ns_mov_b32 s55, {229376+4096}")
        for x in lp.start(): a(x)
        self.stamp()
        for x in lp.loop("P4_loop"): a(x)
        self.stamp()
        acc = lambda j, tb, r: ACC + (j * NTB + tb) * 4 + r
        n = 0
        for pr in range(2):
            for jj in range(7):
                t = 16 + 4 * (n % 4); n += 1
                el = [(acc(jj, tb, r), acc(7 + jj, tb, r), 10 + tb) for tb in (2 * pr, 2 * pr + 1) for r in range(4)]
                for g, u, s in el: a(f"v_mul_f32 v{g}, v{g}, v{s}")
                for g, u, s in el: a(f"v_exp_f32 v{g}, v{g}")
                for g, u, s in el: a(f"v_add_f32 v{g}, 1.0, v{g}")
                for g, u, s in el: a(f"v_rcp_f32 v{g}, v{g}")
                for g, u, s in el: a(f"v_mul_f32 v{u}, v{u}, v{g}")
                for i in range(4): a(f"v_cvt_pk_bf16_f32 v{t+i}, v{el[2*i][1]}, v{el[2*i+1][1]}")
                a(f"v_permlane16_swap_b32 v{t}, v{t+2}\nv_permlane16_swap_b32 v{t+1}, v{t+3}")
                so = ["0", "s53", "s54", "s55"][2 * pr + jj // 4]
                a(f"buffer_store_dwordx4 v[{t}:{t+3}], v14, s[40:43], {so} offen offset:{1024*(jj%4)}")

    def p5(self):
        a = self.a
        NTB, NFB, R, XS, WR = 2, 4, 16, 8, 8
        ACC = 32; AX = 0; AW = XS * 8
        self.w64_setup(16, 3584)
        self.x_setup(WS_HH, "s_lshl_b32 s52, s26, 2\ns_add_u32 s52, s52, s3", 1, 229376)
        def frag_ops(s, j, slot):
            r = AW + 4 * slot; off = (s % R) * 4096
            return [f"ds_read_b64_tr_b16 a[{r}:{r+1}], v{5+j} offset:{off}",
                    f"ds_read_b64_tr_b16 a[{r+2}:{r+3}], v{5+j} offset:{off+512}"]
        def mfma(s, j, tb, slot):
            d = ACC + (j * NTB + tb) * 4; xr = AX + (s % XS) * 8 + 4 * tb
            return f"v_mfma_f32_16x16x32_bf16 v[{d}:{d+3}], a[{AW+4*slot}:{AW+4*slot+3}], a[{xr}:{xr+3}], v[{d}:{d+3}]"
        lp = Loop(NTB, NFB, 112, 1, R, 8, 6, XS, 6, WR, 16, 4, self.x_ops_fn(NTB, AX, XS), self.w64_dma(R), frag_ops, mfma)
        for x in lp.prologue_mixed(): a(x)
        a(f"""
        s_lshl_b32 s56, s26, 2
        s_add_u32 s56, s56, s3
        s_lshl_b32 s52, s56, 16
        s_lshl_b32 s53, s27, 12
        s_add_u32 s52, s52, s53
        s_add_u32 s52, s52, {WS_HC}
        """)
        self.srd(40, 22, "s52", 4096)
        a(f"s_lshl_b32 s52, s56, 7\ns_add_u32 s52, s52, {WS_HM}")
        self.srd(32, 22, "s52", 128)
        a("""
        v_lshrrev_b32 v10, 1, v2
        v_and_b32 v11, 1, v2
        v_lshlrev_b32 v12, 9, v10
        v_lshl_add_u32 v12, v1, 4, v12
        v_lshl_add_u32 v12, v11, 3, v12
        v_lshlrev_b32 v13, 2, v1
        v_lshlrev_b32 v15, 11, v1
        v_lshl_add_u32 v15, v11, 5, v15
        v_lshl_add_u32 v15, v10, 4, v15
        """)
        HR = 64
        for j in range(4):
            for tb in range(2):
                r = HR + 2 * (j * 2 + tb)
                a(f"buffer_load_dwordx2 v[{r}:{r+1}], v12, s[40:43], 0 offen offset:{1024*j+256*tb}")
        a("buffer_load_dword v80, v13, s[32:35], 0 offen\nbuffer_load_dword v81, v13, s[32:35], 0 offen offset:64")
        n = self.rstd_loads("s_lshl_b32 s52, s56, 5", 2, 84, 14)
        lp.note_vm(10 + n, ("init", 0))
        for r in range(32): a(f"v_mov_b32 v{ACC+r}, 0")
        a("s_lshl_b32 s52, s56, 16\ns_lshl_b32 s53, s27, 7\ns_add_u32 s52, s52, s53\ns_sub_u32 s53, 65536, s53")
        self.srd(40, 18, "s52", "s53")
        a("s_mov_b32 s53, 32768")
        for x in lp.start(): a(x)
        self.stamp()
        for x in lp.loop("P5_loop"): a(x)
        self.stamp()
        self.rstd_finish(2, 84, 82, 14)
        acc = lambda j, tb, r: ACC + (j * NTB + tb) * 4 + r
        n = 0
        for tb in range(2):
            for jp in range(2):
                t = 96 + 4 * n; n += 1
                for h in range(2):
                    j = 2 * jp + h; hr = HR + 2 * (j * 2 + tb); u = 112 + 4 * h
                    for p in range(2):
                        a(f"v_lshlrev_b32 v{u+2*p}, 16, v{hr+p}\nv_and_b32 v{u+2*p+1}, 0xffff0000, v{hr+p}")
                    for r in range(4): a(f"v_add_f32 v{u+r}, v{u+r}, v{80+tb}")
                    for r in range(4): a(f"v_fmac_f32 v{u+r}, v{acc(j,tb,r)}, v{82+tb}")
                    for p in range(2): a(f"v_cvt_pk_bf16_f32 v{t+2*h+p}, v{u+2*p}, v{u+2*p+1}")
                a(f"v_permlane16_swap_b32 v{t}, v{t+2}\nv_permlane16_swap_b32 v{t+1}, v{t+3}")
                a(f"buffer_store_dwordx4 v[{t}:{t+3}], v15, s[40:43], {'s53' if tb else '0'} offen offset:{64*jp}")

HEADER = open("cdna_kernels/" + KNAME + ".s.ref").read().split("; Override")[0]

def multi(timers=False, extra_empty=0):
    phases = [("p0", 256, 96, 0), ("p1", 49152, 160, 88), ("p2", 65536, 240, 148), ("p3", 65536 + 4352, 96, 96), ("p4", 4 * 16896, 256, 80), ("p5", 65536, 128, 96)]
    hdr = HEADER; body = TARGET
    for i, (p, lds, nv, na) in enumerate(phases):
        name = f"{p}_kernel"
        g = Gen(timers)
        g.entry(f"{p}_end")
        getattr(g, p)()
        g.dump_timers(i)
        g.a(f"{p}_end:\ns_endpgm")
        hdr += f"; @launch kernel={name} grid=(256,1,1) block=(256,1,1) lds={lds}\n"
        body += kernel_header(name) + g.a.text() + kernel_desc(name, nv, na)
    for i in range(extra_empty):
        hdr += "; @launch kernel=em_kernel grid=(256,1,1) block=(256,1,1) lds=0\n"
    if extra_empty:
        body += kernel_header("em_kernel") + "    s_endpgm\n" + kernel_desc("em_kernel", 8)
    return hdr + body

if __name__ == "__main__":
    open("multi.s", "w").write(multi())
    open("multi_t.s", "w").write(multi(timers=True))
    open("multi_e4.s", "w").write(multi(extra_empty=4))
```

```python
import re
from asmlib import check_trace, pad_hazards

class Loop:
    def __init__(self, NTB, NFB, NST, SK, R, L, XD, XS, LA, WR, U, BP,
                 x_ops, dma_ops, frag_ops, mfma, iter_ops=(), pre=None, extra=None, cnt="s51", clip=False):
        self.__dict__.update(locals())
        assert NST % U == 0 and U % (R * SK) == 0 and U % XS == 0 and (U * NFB) % WR == 0
        assert XD < XS and LA < WR and BP % SK == 0 and U % BP == 0 and NST // U >= 1
        if pre is None: self.pre = L
        assert self.pre <= R and (self.pre == L or NST == U)
        self.vm = []
        self.ds = []
        self.last_bar = None
        self.cur_s0 = 0

    def _vwait(self, tags):
        idx = [i for i, t in enumerate(self.vm) if t in tags]
        if not idx: return None
        return len(self.vm) - 1 - max(idx)

    def prologue_dma(self):
        out = []
        for u in range(self.pre):
            m0, lds, post = self.dma_ops(u)
            out.append(m0); out += lds; out += post
            self.vm += [("D", u)] * len(lds)
        return out
    def prologue_x(self):
        out = []
        for s in range(self.XD):
            lds, post = self.x_ops(s)
            out += lds; out += post
            self.vm += [("X", s)] * len(lds)
        return out
    def prologue_mixed(self):
        out = []
        for i in range(max(self.L, self.XD)):
            if i < self.XD:
                lds, post = self.x_ops(i); out += lds + post; self.vm += [("X", i)] * len(lds)
            if i < self.L:
                m0, lds, post = self.dma_ops(i); out += [m0] + lds + post; self.vm += [("D", i)] * len(lds)
        return out
    def note_vm(self, n, tag=("other", 0)):
        self.vm += [tag] * n
    def start(self):
        out = []
        n = self._vwait({("D", u) for u in range(self.BP // self.SK)})
        out += [f"s_waitcnt vmcnt({min(n, 63)})", "s_barrier"]
        self.last_bar = -self.LA
        for gb in range(self.LA):
            s, j = divmod(gb, self.NFB)
            ops = self.frag_ops(s, j, gb % self.WR)
            out += ops; self.ds += [gb] * len(ops)
        return out

    def _body(self, s0):
        NTB, NFB, SK, R, L, XD, LA, WR, BP = self.NTB, self.NFB, self.SK, self.R, self.L, self.XD, self.LA, self.WR, self.BP
        out = []
        sched = {}
        self.cur_s0 = s0
        for su in range(self.U):
            s = s0 + su
            items = []
            xl, xpost = self.x_ops(s + XD)
            xi = [("X", s + XD, t) for t in xl]
            if self.clip and s + XD >= self.NST: xi = []
            di = []
            u = s // SK + L
            m0, dl, dpost = self.dma_ops(u)
            if u >= self.pre and not (self.clip and u * SK >= self.NST):
                part = s % SK
                lo, hi = len(dl) * part // SK, len(dl) * (part + 1) // SK
                di = [("D", u, t) for t in dl[lo:hi]]
            seq = []
            a_, b_ = list(xi), list(di)
            while a_ or b_:
                if a_ and (not b_ or len(a_) >= len(b_)): seq.append(a_.pop(0))
                else: seq.append(b_.pop(0))
            n = len(seq)
            slots = NFB * NTB
            assert not self.clip or self.NST == self.U
            for i, it in enumerate(seq):
                pos = (i * slots + slots // 2) // n
                lst = sched.setdefault((s, pos), [])
                if it[0] == "D" and it[2] is dl[0]:
                    p2 = max(pos - 1, 0)
                    if p2 == pos: lst.append(("s", 0, m0)); lst.append(("s", 0, "s_nop 0"))
                    else: sched.setdefault((s, p2), []).append(("s", 0, m0))
                lst.append(it)
                post = []
                if it[0] == "X" and it[2] is xl[-1]: post = xpost
                if it[0] == "D" and it[2] is dl[-1]: post = dpost
                for k_, t in enumerate(post): sched.setdefault((s, min(pos + 1 + (k_ if len(post) * 2 <= slots and False else 0), slots - 1)), []).append(("s", 0, t))
            if self.extra:
                for pos, tag, t in self.extra(s, su): sched.setdefault((s, pos), []).append((tag, 0, t))
        for su in range(self.U):
            s = s0 + su
            for j in range(NFB):
                gb = s * NFB + j
                wv = None
                if j == 0:
                    wv = self._vwait({("X", s)})
                nxt = gb + LA
                bar = nxt % (NFB * BP) == 0
                if self.clip and nxt >= self.NST * NFB: bar = False
                if bar:
                    s1 = nxt // NFB
                    w2 = self._vwait({("D", u) for u in range(s1 // SK, (s1 + BP) // SK)})
                    if w2 is None: w2 = 63
                    wv = w2 if wv is None else min(wv, w2)
                idx = max(i for i, t in enumerate(self.ds) if t == gb)
                wl = len(self.ds) - 1 - idx
                if wv is not None: wv = min(wv, 63)
                assert wl <= 15, wl
                if bar:
                    out.append(f"s_waitcnt vmcnt({wv})"); out.append("s_barrier"); out.append(f"s_waitcnt lgkmcnt({wl})")
                    self.last_bar = gb
                elif wv is not None:
                    out.append(f"s_waitcnt vmcnt({wv}) lgkmcnt({wl})")
                else:
                    out.append(f"s_waitcnt lgkmcnt({wl})")
                s2, j2 = divmod(nxt, NFB)
                fr = self.frag_ops(s2, j2, nxt % WR)
                if self.clip and s2 >= self.NST: fr = []
                for tb in range(NTB):
                    out.append(self.mfma(s, j, tb, gb % WR))
                    k = (len(fr) + (NTB - tb) - 1) // (NTB - tb)
                    oth = sched.get((s, j * NTB + tb), [])
                    if oth and tb < NTB - 1 and len(fr) <= NTB - tb - 1: k = 0
                    for _ in range(k):
                        out.append(fr.pop(0)); self.ds.append(nxt)
                    for tag, ss, t in oth:
                        out.append(t)
                        if tag == "D":
                            old_last = (ss - R + 1) * SK * NFB - 1
                            assert ss - R < 0 or old_last < self.last_bar, ("ring WAR", s, j, ss, self.last_bar)
                        if tag in ("D", "X", "V"): self.vm.append((tag, ss))
        return out

    def loop(self, label):
        n = self.NST // self.U
        bodies = [self._body(i * self.U) for i in range(min(n, 3))]
        b = bodies[0]
        for o in bodies[1:]:
            assert len(o) == len(b)
            for i, (x, y) in enumerate(zip(b, o)):
                if x != y:
                    px, py = re.findall(r"\d+", x), re.findall(r"\d+", y)
                    assert x.startswith("s_waitcnt") and re.sub(r"\d+", "", x) == re.sub(r"\d+", "", y), (x, y)
                    mins = iter([str(min(int(p), int(q))) for p, q in zip(px, py)])
                    b[i] = re.sub(r"\d+", lambda m: next(mins), x)
        if n == 1:
            return b
        tail = list(self.iter_ops) + [f"s_sub_u32 {self.cnt}, {self.cnt}, 1", f"s_cmp_lg_u32 {self.cnt}, 0"]
        mf = [i for i, x in enumerate(b) if x.startswith("v_mfma")]
        body = list(b)
        salu_scc = [i for i, x in enumerate(b) if x.startswith(("s_add", "s_sub", "s_and", "s_cselect"))]
        last_scc = max(salu_scc) if salu_scc else -1
        cand = [i for i in mf if i > last_scc]
        if len(cand) > len(tail) and not self.iter_ops:
            for k, t in enumerate(reversed(tail)):
                body.insert(cand[-1 - k - 1] + 1, t)
        else:
            body += tail
        body = pad_hazards(body)
        check_trace(body + [f"s_cbranch_scc1 {label}"] + body)
        return [f"s_mov_b32 {self.cnt}, {n}", f"{label}:"] + body + [f"s_cbranch_scc1 {label}"]
```

```python
import sys, math, struct
from asmlib import *
from gemm import Loop

KNAME = "sequential_preLN__sliding_block__glu_gated_glu__prompt"
MB = 1 << 20
WS_XN, WS_QF, WS_KF, WS_VF, WS_OT, WS_HC = 0, 4*MB, 8*MB, 12*MB, 16*MB, 20*MB
WS_HH = 24*MB
WS_XM = 40*MB
WS_HM = WS_XM + 8192
WS_WB = WS_HM + 8192
WS_SSQ = WS_WB + 8192
WS_SY = 41*MB
SY_FLAG = 8192
SY_SIZE = SY_FLAG + 256 * 128
WS_TM = 48*MB
SRD3 = "0x00020000"
LOG2E = 1.4426950408889634
LDS_A, LDS_B = 0, 69888
LDS_TOTAL = LDS_B + 4 * 16896
def f2h(x): return "0x%08x" % struct.unpack("<I", struct.pack("<f", x))[0]

class Gen:
    def __init__(self, timers=False, rot=True, **opt):
        self.a = Asm(); self.timers = timers; self.rot = rot; self.nt = 0; self.opt = opt
    def entry(self, end):
        self.a(f"""
        s_cmp_ge_u32 s2, 256
        s_cbranch_scc1 {end}
        s_load_dwordx16 s[4:19], s[0:1], 0
        s_load_dwordx4 s[20:23], s[0:1], 64
        v_lshrrev_b32 v3, 6, v0
        v_and_b32 v0, 63, v0
        v_readfirstlane_b32 s3, v3
        v_and_b32 v1, 15, v0
        v_lshrrev_b32 v2, 4, v0
        s_and_b32 s52, s2, 7
        s_lshr_b32 s53, s2, 3
        s_and_b32 s54, s53, 3
        s_lshr_b32 s55, s53, 2
        s_and_b32 s24, s52, 4
        s_add_u32 s24, s24, s54
        s_and_b32 s25, s52, 3
        s_lshl_b32 s25, s25, 3
        s_add_u32 s25, s25, s55
        s_lshr_b32 s26, s52, 1
        s_lshl_b32 s26, s26, 2
        s_add_u32 s26, s26, s54
        s_and_b32 s27, s52, 1
        s_lshl_b32 s27, s27, 3
        s_add_u32 s27, s27, s55
        s_lshl_b32 s54, s54, 1
        s_add_u32 s58, s54, s55
        s_and_b32 s58, s58, 7
        """)
        self.stamp()
        self.a("s_waitcnt lgkmcnt(0)")
    def stamp(self):
        if self.timers:
            assert self.nt < 13
            self.a(f"s_memtime s[{76+2*self.nt}:{77+2*self.nt}]"); self.nt += 1
    def dump_timers(self, slot):
        if not self.timers: return
        a = self.a
        a(f"""
        s_waitcnt lgkmcnt(0)
        s_lshl_b32 s52, s2, 2
        s_add_u32 s52, s52, s3
        s_lshl_b32 s52, s52, 6
        s_add_u32 s52, s52, {WS_TM + slot*65536}
        s_add_u32 s72, s22, s52
        s_addc_u32 s73, s23, 0
        s_mov_b32 s74, 64
        s_mov_b32 s75, {SRD3}
        v_lshlrev_b32 v254, 6, v0
        """)
        for i in range(self.nt):
            a(f"v_mov_b32 v255, s{76+2*i}\nbuffer_store_dword v255, v254, s[72:75], 0 offen offset:{4*i}")
        self.nt = 0
    def srd(self, d, ptr, off, size):
        a = self.a
        if off == 0: a(f"s_mov_b32 s{d}, s{ptr}\ns_mov_b32 s{d+1}, s{ptr+1}")
        else: a(f"s_add_u32 s{d}, s{ptr}, {off}\ns_addc_u32 s{d+1}, s{ptr+1}, 0")
        a(f"s_mov_b32 s{d+2}, {size}\ns_mov_b32 s{d+3}, {SRD3}")
    def red16_32(self, v, t, op):
        self.a(f"""
        v_mov_b32 v{t}, v{v}
        v_permlane16_swap_b32 v{t}, v{v}
        {op} v{v}, v{t}, v{v}
        v_mov_b32 v{t}, v{v}
        v_permlane32_swap_b32 v{t}, v{v}
        {op} v{v}, v{t}, v{v}
        """)
    def emit(self, ops):
        for x in ops: self.a(x)
    def signal(self, off_expr, t0, t1):
        a = self.a; L = a.label("SIG")
        a(f"s_waitcnt vmcnt(0) lgkmcnt(0)\ns_barrier\ns_cmp_lg_u32 s3, 0\ns_cbranch_scc1 {L}")
        a(off_expr)
        a(f"v_lshlrev_b32 v{t0}, 20, v0\nv_add_u32 v{t0}, s52, v{t0}\nv_mov_b32 v{t1}, 1\nbuffer_atomic_add v{t1}, v{t0}, s[64:67], 0 offen sc1\n{L}:")
    def wait(self, off_expr, target, t0, t1, skip_if=None):
        a = self.a; L = a.label("WT"); P = a.label("POLL")
        a(f"s_cmp_lg_u32 s3, 0\ns_cbranch_scc1 {L}")
        if skip_if: a(f"{skip_if}\ns_cbranch_scc1 {L}")
        a(off_expr)
        a(f"""
        v_mov_b32 v{t0}, s52
        s_mov_b32 s52, 0x40000
        {P}:
        buffer_load_dword v{t1}, v{t0}, s[64:67], 0 offen sc1
        s_waitcnt vmcnt(0)
        v_cmp_gt_u32 vcc, {target}, v{t1}
        s_sub_u32 s52, s52, 1
        s_cbranch_scc1 {L}
        s_cbranch_vccnz {P}
        {L}:
        s_barrier
        """)
    def touch_setup(self, ptr, nbytes, vo):
        per_wave = nbytes // 1024
        assert per_wave <= 8192
        self.a(f"s_lshl_b32 s52, s2, 2\ns_add_u32 s52, s52, s3\ns_mul_i32 s52, s52, {per_wave}")
        self.srd(68, ptr, "s52", per_wave)
        self.a(f"v_lshlrev_b32 v{vo}, 7, v0")
    def touch(self, ptr, nbytes, vo, vd):
        self.touch_setup(ptr, nbytes, vo)
        self.a(f"buffer_load_dword v{vd}, v{vo}, s[68:71], 0 offen")
    def rot_init(self, off, ctr, stride, period):
        if not self.rot or not period:
            self.a(f"s_mov_b32 {off}, 0"); return
        base = f"s{int(ctr[1:])+2}"
        if stride & (stride - 1) == 0: self.a(f"s_mul_i32 {ctr}, s58, {period//8*stride}\ns_mov_b32 {off}, {ctr}\ns_mov_b32 {base}, 0")
        else: self.a(f"s_mul_i32 {ctr}, s58, {period//8}\ns_mul_i32 {off}, {ctr}, {stride}\ns_mov_b32 {base}, 0")
    def rot_next(self, i, off, ctr, stride, period):
        if not self.rot or not period: return [f"s_add_u32 {off}, {off}, {stride}"]
        base = f"s{int(ctr[1:])+2}"
        o = [f"s_add_u32 {base}, {base}, {period*stride}"] if i % period == period - 1 else []
        if stride & (stride - 1) == 0:
            return o + [f"s_add_u32 {ctr}, {ctr}, {stride}", f"s_and_b32 {ctr}, {ctr}, {period*stride-1}", f"s_add_u32 {off}, {ctr}, {base}"]
        return o + [f"s_add_u32 {ctr}, {ctr}, 1", f"s_and_b32 {ctr}, {ctr}, {period-1}", f"s_mul_i32 {off}, {ctr}, {stride}", f"s_add_u32 {off}, {off}, {base}"]
    def x_setup(self, ws_off, blk_expr, nblk, blkbytes, period=0):
        a = self.a
        a(blk_expr)
        a(f"s_mul_i32 s52, s52, {blkbytes}\ns_add_u32 s52, s52, {ws_off}")
        self.srd(36, 22, "s52", nblk * blkbytes)
        a("v_lshlrev_b32 v3, 9, v2\nv_lshl_add_u32 v3, v1, 4, v3")
        self.rot_init("s50", "s59", 2048, period)
        if nblk == 2: a(f"v_add_u32 v4, {blkbytes}, v3")
    def x_ops_fn(self, NTB, AX, XS, period=0, fl=""):
        def x_ops(s):
            st = AX + (s % XS) * 4 * NTB
            l = [f"buffer_load_dwordx4 a[{st+4*tb}:{st+4*tb+3}], v{3 + tb//2}, s[36:39], s50 offen offset:{256*(tb&1)}{fl}" for tb in range(NTB)]
            return l, self.rot_next(s, "s50", "s59", 2048, period)
        return x_ops

    def p0(self):
        a = self.a
        a("s_lshl_b32 s52, s24, 5\ns_add_u32 s56, s52, s25\ns_lshl_b32 s53, s56, 14")
        self.srd(28, 4, "s53", 16384)
        a("""
        v_and_b32 v3, 7, v0
        v_lshrrev_b32 v4, 3, v0
        s_lshl_b32 s54, s3, 9
        v_lshlrev_b32 v5, 11, v3
        v_lshl_add_u32 v5, v4, 4, v5
        v_add_u32 v5, s54, v5
        """)
        for i in range(4): a(f"buffer_load_dwordx4 v[{16+4*i}:{19+4*i}], v5, s[28:31], 0 offen offset:{128*i}")
        a("s_lshl_b32 s53, s56, 2\ns_add_u32 s57, s53, s3\ns_lshl_b32 s53, s57, 11")
        self.srd(32, 8, "s53", 2048)
        a("""
        v_lshlrev_b32 v6, 4, v0
        buffer_load_dwordx4 v[32:35], v6, s[32:35], 0 offen
        buffer_load_dwordx4 v[36:39], v6, s[32:35], 0 offen offset:1024
        """)
        self.touch(6, 6291456, 96, 97)
        self.srd(64, 22, WS_SY, SY_SIZE)
        a(f"""
        s_lshl_b32 s52, s2, 7
        s_add_u32 s52, s52, {SY_FLAG}
        s_lshl_b32 s53, s2, 8
        s_cmp_lt_u32 s2, 24
        s_cselect_b32 s53, s53, s52
        v_lshlrev_b32 v98, 20, v0
        v_mov_b32 v99, 0
        buffer_store_dword v99, v98, s[64:67], s52 offen
        buffer_store_dword v99, v98, s[64:67], s53 offen
        """)
        a(f"""
        s_lshr_b32 s53, s56, 2
        s_lshl_b32 s53, s53, 16
        s_and_b32 s54, s56, 3
        s_lshl_b32 s54, s54, 7
        s_add_u32 s53, s53, s54
        s_add_u32 s53, s53, {WS_XN}
        s_sub_u32 s54, 65536, s54
        """)
        self.srd(36, 22, "s53", "s54")
        a(f"s_lshl_b32 s53, s56, 5\ns_add_u32 s53, s53, {WS_XM}")
        self.srd(40, 22, "s53", 32)
        a(f"s_lshl_b32 s53, s57, 1\ns_add_u32 s53, s53, {WS_WB}")
        self.srd(44, 22, "s53", 2052)
        a("""
        s_lshl_b32 s54, s3, 14
        v_lshlrev_b32 v7, 9, v4
        v_lshl_add_u32 v7, v3, 4, v7
        v_add_u32 v7, s54, v7
        s_lshl_b32 s54, s3, 2
        v_lshlrev_b32 v8, 4, v3
        v_add_u32 v9, s54, v8
        s_mov_b32 s53, 4096
        s_mov_b32 s54, 8192
        s_mov_b32 s55, 12288
        s_waitcnt vmcnt(5)
        """)
        for i in range(16): a(f"v_lshlrev_b32 v{48+2*i}, 16, v{16+i}\nv_and_b32 v{49+2*i}, 0xffff0000, v{16+i}")
        for i in range(8): a(f"v_add_f32 v{16+i}, v{48+i}, v{56+i}")
        for i in range(8): a(f"v_add_f32 v{24+i}, v{64+i}, v{72+i}")
        for i in range(8): a(f"v_add_f32 v{16+i}, v{16+i}, v{24+i}")
        for n in (4, 2, 1):
            for i in range(n): a(f"v_add_f32 v{16+i}, v{16+i}, v{16+n+i}")
        a("v_add_f32_dpp v16, v16, v16 row_ror:8 row_mask:0xf bank_mask:0xf")
        self.red16_32(16, 17, "v_add_f32")
        a("ds_write_b32 v9, v16\ns_waitcnt vmcnt(3)")
        for i in range(8): a(f"v_lshlrev_b32 v{80+2*i}, 16, v{32+i}\nv_and_b32 v{81+2*i}, 0xffff0000, v{32+i}")
        for n in (8, 4, 2, 1):
            for i in range(n): a(f"v_add_f32 v{80+i}, v{80+i}, v{80+n+i}")
        a("""
        s_waitcnt lgkmcnt(0)
        s_barrier
        ds_read_b128 v[20:23], v8
        v_add_f32_dpp v80, v80, v80 quad_perm:[1,0,3,2] row_mask:0xf bank_mask:0xf
        v_add_f32_dpp v80, v80, v80 quad_perm:[2,3,0,1] row_mask:0xf bank_mask:0xf
        v_add_f32_dpp v80, v80, v80 row_half_mirror row_mask:0xf bank_mask:0xf
        v_add_f32_dpp v80, v80, v80 row_mirror row_mask:0xf bank_mask:0xf
        """)
        self.red16_32(80, 81, "v_add_f32")
        a(f"""
        v_mul_f32 v80, {f2h(1/1024)}, v80
        v_cvt_pk_bf16_f32 v81, v80, v80
        v_lshlrev_b32 v82, 16, v81
        v_sub_f32 v82, v80, v82
        v_cvt_pk_bf16_f32 v82, v82, v82
        v_lshlrev_b32 v83, 12, v0
        buffer_store_short v81, v83, s[44:47], 0 offen
        buffer_store_short v82, v83, s[44:47], 0 offen offset:2048
        s_waitcnt lgkmcnt(0)
        v_add_f32 v20, v20, v21
        v_add_f32 v22, v22, v23
        v_add_f32 v20, v20, v22
        v_mul_f32 v20, {f2h(1/1024)}, v20
        """)
        for i in range(32): a(f"v_sub_f32 v{48+i}, v{48+i}, v20")
        for i in range(4): a(f"v_mul_f32 v{16+i}, v{48+i}, v{48+i}")
        for i in range(4, 32): a(f"v_fmac_f32 v{16+i%4}, v{48+i}, v{48+i}")
        a("""
        v_add_f32 v16, v16, v17
        v_add_f32 v18, v18, v19
        v_add_f32 v16, v16, v18
        v_add_f32_dpp v16, v16, v16 row_ror:8 row_mask:0xf bank_mask:0xf
        """)
        self.red16_32(16, 17, "v_add_f32")
        a(f"""
        ds_write_b32 v9, v16 offset:128
        v_lshlrev_b32 v10, 2, v0
        s_cmp_lg_u32 s3, 0
        s_cbranch_scc1 P0_nomean
        buffer_store_dword v20, v10, s[40:43], 0 offen
        P0_nomean:
        s_waitcnt lgkmcnt(0)
        s_barrier
        ds_read_b128 v[24:27], v8 offset:128
        v_mov_b32 v28, {f2h(1e-5)}
        s_waitcnt lgkmcnt(0)
        v_add_f32 v24, v24, v25
        v_add_f32 v26, v26, v27
        v_add_f32 v24, v24, v26
        v_fmac_f32 v28, {f2h(1/1024)}, v24
        v_rsq_f32 v28, v28
        """)
        for i in range(32): a(f"v_mul_f32 v{48+i}, v{48+i}, v28")
        for i in range(16): a(f"v_cvt_pk_bf16_f32 v{32+i}, v{48+2*i}, v{49+2*i}")
        for i, so in enumerate(["0", "s53", "s54", "s55"]):
            a(f"buffer_store_dwordx4 v[{32+4*i}:{35+4*i}], v7, s[36:39], {so} offen")
        self.stamp()

    def p1(self):
        a = self.a
        NTB, NFB, R, XS, WR = 4, 6, 4, 4, 6
        US = 12288; ACC = 32; AX = 0; AW = XS * 16
        self.x_setup(WS_XN, "s_lshl_b32 s52, s24, 2\ns_add_u32 s52, s52, s3\ns_lshl_b32 s52, s52, 1", 2, 65536, 16)
        a("s_lshl_b32 s52, s25, 6\ns_sub_u32 s53, 0x600000, s52")
        self.srd(28, 6, "s52", "s53")
        a(f"s_mul_i32 s53, s3, 98304\ns_mul_i32 s48, s3, 3072")
        self.rot_init("s49", "s60", 64*6144, 8)
        for i in range(3):
            a(f"""
            v_add_u32 v10, {64*i}, v0
            v_mul_u32_u24 v11, 5462, v10
            v_lshrrev_b32 v11, 16, v11
            v_mul_u32_u24 v12, 12, v11
            v_sub_u32 v12, v10, v12
            v_lshrrev_b32 v13, 2, v11
            v_and_b32 v13, 2, v13
            v_xor_b32 v12, v12, v13
            v_lshrrev_b32 v13, 2, v12
            v_and_b32 v12, 3, v12
            v_mul_u32_u24 v{5+i}, 6144, v11
            v_lshl_add_u32 v{5+i}, v13, 11, v{5+i}
            v_lshl_add_u32 v{5+i}, v12, 4, v{5+i}
            v_add_u32 v{5+i}, s53, v{5+i}
            """)
            if i: a(f"v_subrev_u32 v{5+i}, {1024*i}, v{5+i}")
        def dma_ops(u):
            return (f"s_add_u32 m0, s48, {LDS_A + (u % R) * US}",
                    [f"buffer_load_dwordx4 v{5+i}, s[28:31], s49 offen offset:{1024*i} lds" for i in range(3)],
                    self.rot_next(u, "s49", "s60", 64*6144, 8))
        def frag_ops(s, j, slot):
            off = LDS_A + ((s // 2) % R) * US + (s % 2) * 6144 + 32 * j; r = AW + 4 * slot
            return [f"ds_read_b64_tr_b16 a[{r}:{r+1}], v{8 + (j & 1)} offset:{off}",
                    f"ds_read_b64_tr_b16 a[{r+2}:{r+3}], v{8 + (j & 1)} offset:{off+768}"]
        def mfma(s, j, tb, slot):
            d = ACC + (j * NTB + tb) * 4
            w = f"a[{AW+4*slot}:{AW+4*slot+3}]"; xr = AX + (s % XS) * 16 + 4 * tb; x = f"a[{xr}:{xr+3}]"
            if j >= 4: w, x = x, w
            return f"v_mfma_f32_16x16x32_bf16 v[{d}:{d+3}], {w}, {x}, v[{d}:{d+3}]"
        extra = None; iter_ops = ()
        if self.opt.get("touch_p1"):
            def extra(s, su):
                if su % 4 != 1: return []
                L = f"P1_t{su}"
                return [(9, "s", f"s_cmp_eq_u32 s3, {su//4}"), (9, "s", f"s_cbranch_scc0 {L}"),
                        (9, "s", "buffer_load_dword v15, v14, s[68:71], 0 offen"), (9, "s", f"{L}:")]
            iter_ops = ["s_add_u32 s68, s14, s63", "s_addc_u32 s69, s15, 0"]
        lp = Loop(NTB, NFB, 32, 2, R, 2, 3, XS, 4, WR, 16, 2, self.x_ops_fn(NTB, AX, XS, 16), dma_ops, frag_ops, mfma, extra=extra, iter_ops=iter_ops)
        self.emit(lp.prologue_mixed())
        a("""
        v_mul_u32_u24 v8, 1536, v2
        v_lshrrev_b32 v10, 2, v1
        v_mul_u32_u24 v10, 192, v10
        v_add_u32 v8, v8, v10
        v_and_b32 v10, 3, v0
        v_lshl_add_u32 v8, v10, 3, v8
        v_and_b32 v10, 1, v2
        v_lshlrev_b32 v10, 5, v10
        v_sub_u32 v9, v8, v10
        v_add_u32 v8, v8, v10
        """)
        for r in range(NTB * NFB * 4): a(f"v_mov_b32 v{ACC+r}, 0")
        self.srd(64, 22, WS_SY, SY_SIZE)
        if self.opt.get("touch_p1"):
            self.touch_setup(12, 7340032, 14); a("s_mov_b32 s63, s52")
        a(f"""
        s_lshl_b32 s52, s25, 17
        s_lshl_b32 s53, s24, 14
        s_add_u32 s52, s52, s53
        s_lshl_b32 s53, s3, 12
        s_add_u32 s52, s52, s53
        s_add_u32 s52, s52, {WS_KF}
        v_lshlrev_b32 v10, 4, v0
        s_add_u32 s53, s53, {LDS_B + 16384}
        v_add_u32 v11, s53, v10
        s_cmp_lg_u32 s24, 7
        s_cselect_b32 s53, {4*MB + 4096}, 0
        """)
        self.srd(40, 22, "s52", "s53")
        a(f"s_mov_b32 s54, {4*MB}")
        self.emit(lp.start())
        self.stamp()
        self.emit(lp.loop("P1_loop"))
        self.stamp()
        c = 32 ** -0.5 * LOG2E
        T = 128
        acc = lambda j, tb, r: ACC + (j * NTB + tb) * 4 + r
        for tb in range(4):
            t = T + 4 * tb
            for h in range(2):
                for p in range(2): a(f"v_cvt_pk_bf16_f32 v{t+2*h+p}, v{acc(2+h,tb,2*p)}, v{acc(2+h,tb,2*p+1)}")
            a(f"buffer_store_dwordx4 v[{t}:{t+3}], v10, s[40:43], 0 offen offset:{1024*tb} sc1")
        for pr in range(2):
            for db in range(2):
                t = T + 16 + 4 * (2 * pr + db)
                for h in range(2):
                    for p in range(2): a(f"v_cvt_pk_bf16_f32 v{t+2*h+p}, v{acc(4+db,2*pr+h,2*p)}, v{acc(4+db,2*pr+h,2*p+1)}")
                a(f"buffer_store_dwordx4 v[{t}:{t+3}], v10, s[40:43], s54 offen offset:{2048*pr+1024*db} sc1")
        for i in range(4): a(f"ds_write_b128 v11, v[{T+4*i}:{T+4*i+3}] offset:{1024*i}")
        for i in range(4): a(f"ds_write_b128 v11, v[{T+16+4*i}:{T+16+4*i+3}] offset:{32768+1024*i}")
        for tb in range(4):
            for h in range(2):
                for r in range(4): a(f"v_mul_f32 v{acc(h,tb,r)}, {f2h(c)}, v{acc(h,tb,r)}")
                for p in range(2): a(f"v_cvt_pk_bf16_f32 v{16+4*tb+2*h+p}, v{acc(h,tb,2*p)}, v{acc(h,tb,2*p+1)}")

    NB = "0xf149f2ca"
    def p2_setup(self):
        a = self.a
        a(f"""
        s_lshl_b32 s52, s24, 2
        s_add_u32 s52, s52, s3
        s_lshl_b32 s52, s52, 17
        s_lshl_b32 s53, s25, 11
        s_add_u32 s52, s52, s53
        s_add_u32 s52, s52, {WS_OT}
        """)
        self.srd(40, 22, "s52", 65536 + 2048)
        a(f"s_lshl_b32 s52, s25, 17\ns_add_u32 s52, s52, {WS_KF}")
        self.srd(36, 22, "s52", 4 * MB + 131072)
        a(f"""
        v_lshlrev_b32 v4, 4, v0
        s_lshl_b32 s54, s3, 12
        s_lshl_b32 s53, s24, 14
        s_sub_u32 s53, s53, 16384
        s_cselect_b32 s53, 0x7f000000, s53
        s_add_u32 s53, s53, s54
        v_add_u32 v3, s53, v4
        s_add_u32 s57, s54, {LDS_B}
        v_add_u32 v5, s57, v4
        v_mov_b32 v6, {self.NB}
        v_lshlrev_b32 v7, 2, v2
        s_mov_b32 s55, 65536
        s_mov_b32 s56, {4*MB}
        """)
        for r in range(4):
            a(f"v_add_u32 v12, {r}, v7\nv_cmp_gt_u32 vcc, v12, v1\nv_cndmask_b32 v{32+r}, 0, v6, vcc\nv_cndmask_b32_e64 v{8+r}, v6, 0, vcc")
        for r in range(4): a(f"v_mov_b32 v12, 0x3f803f80\nv_accvgpr_write_b32 a{144+r}, v12")
        for r in (234, 235, 236, 237): a(f"v_mov_b32 v{r}, 0")
    def p2_halo(self):
        a = self.a
        for lb, so in ((0, "0"), (32768, "s56")):
            a(f"s_add_u32 m0, s57, {lb}")
            for i in range(4): a(f"buffer_load_dwordx4 v3, s[36:39], {so} offen offset:{1024*i} sc1 lds")
    def p2_main(self):
        a = self.a; NB = self.NB
        DM, ER, EP, CQ = 32, 8, 36, 40
        O, S, PZA, PZB = 72, 96, 232, 236
        Sreg = lambda qb, p: S + 68 * qb + 4 * (p - qb)
        for rd in range(2):
            a(f"s_lshl_b32 s52, s24, 3\ns_lshl_b32 s53, s3, 1\ns_add_u32 s52, s52, s53\ns_add_u32 s52, s52, {rd}")
            kq = [f"ds_read_b128 a[{4*p}:{4*p+3}], v5 offset:{rd*2048 + 1024*p}" for p in range(18)]
            vq = [f"ds_read_b128 a[{72+4*i}:{75+4*i}], v5 offset:{32768 + rd*2048 + 1024*i}" for i in range(18)]
            self.emit(kq[:8])
            for p in range(8):
                a(f"s_cmp_lt_u32 s52, {8-p}\ns_cselect_b32 s53, {NB}, 0")
                for r in range(4): a(f"v_mov_b32 v{CQ+4*p+r}, s53")
            for r in range(4): a(f"v_add_f32 v{EP+r}, v{ER+r}, v{CQ}")
            issued = 8
            q = [f"v[{16+8*rd+4*qb}:{19+8*rd+4*qb}]" for qb in range(2)]
            rest = kq[8:] + vq
            M = [12, 13]
            def max_ops(qb, p):
                s = Sreg(qb, p)
                if p == qb: return [f"v_max3_f32 v{M[qb]}, v{s}, v{s+1}, v{s+2}", f"v_max_f32 v{M[qb]}, v{M[qb]}, v{s+3}"]
                return [f"v_max3_f32 v{M[qb]}, v{M[qb]}, v{s}, v{s+1}", f"v_max3_f32 v{M[qb]}, v{M[qb]}, v{s+2}, v{s+3}"]
            todo = []
            for p in range(18):
                a(f"s_waitcnt lgkmcnt({min(15, issued - p - 1)})")
                for qb in range(2):
                    if (qb == 0 and p == 17) or (qb == 1 and p == 0): continue
                    if p == qb: c = f"v[{EP}:{EP+3}]"
                    elif p == 16 + qb: c = f"v[{DM}:{DM+3}]"
                    elif p >= 16: c = "0"
                    else: c = f"v[{CQ+4*(p//2)}:{CQ+4*(p//2)+3}]"
                    s = Sreg(qb, p)
                    a(f"v_mfma_f32_16x16x32_bf16 v[{s}:{s+3}], a[{4*p}:{4*p+3}], {q[qb]}, {c}")
                    todo.append((qb, p))
                    if rest and issued - p - 1 < 13:
                        a(rest.pop(0)); issued += 1
                    if len(todo) > 5: self.emit(max_ops(*todo.pop(0)))
            for t in todo: self.emit(max_ops(*t))
            if rest: a("s_waitcnt lgkmcnt(6)")
            assert len(rest) <= 8
            self.emit(rest)
            for qb in range(2): self.red16_32(M[qb], 14 + qb, "v_max_f32")
            Oreg = lambda qb, k: O + 12 * qb + 4 * k
            first = True
            for P in range(9):
                for qb in range(2):
                    blocks = [p for p in (2 * P, 2 * P + 1) if qb <= p <= 16 + qb]
                    regs = [Sreg(qb, p) + r for p in blocks for r in range(4)]
                    for r in regs: a(f"v_sub_f32 v{r}, v{r}, v{M[qb]}")
                    for r in regs: a(f"v_exp_f32 v{r}, v{r}")
                    if len(blocks) == 2: dst = regs[0]; pq = dst
                    elif qb == 0: dst = PZA; pq = PZA
                    else: dst = PZB + 2; pq = PZB
                    for i in range(len(regs) // 2): a(f"v_cvt_pk_bf16_f32 v{dst+i}, v{regs[2*i]}, v{regs[2*i+1]}")
                    if first: a("s_waitcnt lgkmcnt(0)"); first = False
                    for k in range(3):
                        A = f"a[{72+4*(2*P+k)}:{75+4*(2*P+k)}]" if k < 2 else "a[144:147]"
                        o = Oreg(qb, k)
                        a(f"v_mfma_f32_16x16x32_bf16 v[{o}:{o+3}], {A}, v[{pq}:{pq+3}], {'0' if P == 0 else f'v[{o}:{o+3}]'}")
            for qb in range(2): a(f"v_rcp_f32 v{M[qb]}, v{Oreg(qb,2)}")
            for db in range(2):
                t = S + 4 * db
                for qb in range(2):
                    o = Oreg(qb, db)
                    for r in range(4): a(f"v_mul_f32 v{o+r}, v{o+r}, v{M[qb]}")
                    for p in range(2): a(f"v_cvt_pk_bf16_f32 v{t+2*qb+p}, v{o+2*p}, v{o+2*p+1}")
                a(f"v_permlane16_swap_b32 v{t}, v{t+2}\nv_permlane16_swap_b32 v{t+1}, v{t+3}")
                a(f"buffer_store_dwordx4 v[{t}:{t+3}], v4, s[40:43], {'s55' if rd else '0'} offen offset:{1024*db} sc1")

    def w64_scalar(self, ptr, rows, period=0):
        a = self.a
        a(f"s_lshl_b32 s52, s27, 7\ns_sub_u32 s53, {rows*2048}, s52")
        self.srd(28, ptr, "s52", "s53")
        a(f"s_lshl_b32 s48, s3, 10")
        self.rot_init("s49", "s60", 65536, period)
    def w64_dmaoff(self, vd, t):
        self.a(f"""
        v_lshrrev_b32 v{t}, 3, v0
        v_and_b32 v{t+1}, 7, v0
        v_and_b32 v{t+2}, 2, v{t}
        s_and_b32 s52, s3, 1
        s_lshl_b32 s52, s52, 2
        v_or_b32 v{t+2}, s52, v{t+2}
        v_xor_b32 v{t+1}, v{t+1}, v{t+2}
        s_lshl_b32 s52, s3, 14
        v_lshlrev_b32 v{vd}, 11, v{t}
        v_lshl_add_u32 v{vd}, v{t+1}, 4, v{vd}
        v_add_u32 v{vd}, s52, v{vd}
        """)
    def w64_trbase(self):
        a = self.a
        a("""
        v_lshrrev_b32 v10, 2, v1
        v_lshl_add_u32 v10, v2, 3, v10
        v_lshlrev_b32 v10, 7, v10
        v_and_b32 v11, 3, v0
        v_lshl_add_u32 v10, v11, 3, v10
        v_lshrrev_b32 v11, 3, v1
        v_and_b32 v12, 1, v2
        v_lshl_add_u32 v11, v12, 1, v11
        """)
        for j in range(4): a(f"v_xor_b32 v12, {j}, v11\nv_lshl_add_u32 v{5+j}, v12, 5, v10")
    def w64_dma(self, R, period=0):
        def dma_ops(u):
            return (f"s_add_u32 m0, s48, {LDS_A + (u % R) * 4096}",
                    [f"buffer_load_dwordx4 v{self.vdma}, s[28:31], s49 offen lds"], self.rot_next(u, "s49", "s60", 65536, period))
        return dma_ops
    def rstd_loads(self, tok_expr, ntb, dst, voff):
        a = self.a
        a(tok_expr)
        a(f"s_lshl_b32 s52, s52, 2\ns_sub_u32 s53, 131072, s52\ns_add_u32 s52, s52, {WS_SSQ}")
        self.srd(44, 22, "s52", "s53")
        a(f"v_lshlrev_b32 v{voff}, 15, v2\nv_lshl_add_u32 v{voff}, v1, 2, v{voff}\ns_mov_b32 s53, 8192\ns_mov_b32 s54, 16384\ns_mov_b32 s55, 24576")
        ops = []
        for tb in range(ntb):
            for i, so in enumerate(["0", "s53", "s54", "s55"]):
                ops.append(f"buffer_load_dword v{dst+4*tb+i}, v{voff}, s[44:47], {so} offen offset:{64*tb} sc1")
        return ops
    def rstd_finish(self, ntb, src, dst, tmp, scale=None):
        a = self.a
        for tb in range(ntb):
            s = src + 4 * tb
            a(f"v_add_f32 v{s}, v{s}, v{s+1}\nv_add_f32 v{s+2}, v{s+2}, v{s+3}\nv_add_f32 v{s}, v{s}, v{s+2}")
            self.red16_32(s, tmp, "v_add_f32")
            a(f"v_mov_b32 v{dst+tb}, {f2h(1e-5)}\nv_fmac_f32 v{dst+tb}, {f2h(1/1024)}, v{s}\nv_rsq_f32 v{dst+tb}, v{dst+tb}")
            if scale is not None: a(f"v_mul_f32 v{dst+tb}, {f2h(scale)}, v{dst+tb}")

    def p3_early(self):
        a = self.a
        NTB, NFB, R, XS, WR = 2, 5, 16, 8, 8
        ACC = 32; AX = 0; AW = XS * 8; LB = LDS_A + 65536
        def frag_ops(s, j, slot):
            r = AW + 4 * slot
            if j == 4: return [f"ds_read_b128 a[{r}:{r+3}], v9 offset:{s * 64}"]
            off = LDS_A + (s % R) * 4096
            return [f"ds_read_b64_tr_b16 a[{r}:{r+1}], v{5+j} offset:{off}", f"ds_read_b64_tr_b16 a[{r+2}:{r+3}], v{5+j} offset:{off+512}"]
        def mfma(s, j, tb, slot):
            d = ACC + (j * NTB + tb) * 4; xr = AX + (s % XS) * 8 + 4 * tb
            return f"v_mfma_f32_16x16x32_bf16 v[{d}:{d+3}], a[{AW+4*slot}:{AW+4*slot+3}], a[{xr}:{xr+3}], v[{d}:{d+3}]"
        self.lp3 = lp = Loop(NTB, NFB, 32, 1, R, 10, 6, XS, 6, WR, 32, 4, self.x_ops_fn(NTB, AX, XS, 0, " sc1"), self.w64_dma(R), frag_ops, mfma, pre=16, clip=True)
        self.w64_scalar(8, 1024)
        self.vdma = 4
        self.w64_dmaoff(4, 10)
        a("""
        s_lshl_b32 s56, s26, 2
        s_add_u32 s56, s56, s3
        s_lshl_b32 s52, s56, 16
        s_lshl_b32 s53, s27, 7
        s_add_u32 s52, s52, s53
        s_sub_u32 s53, 65536, s53
        """)
        self.srd(40, 4, "s52", "s53")
        a(f"s_lshl_b32 s52, s56, 7\ns_add_u32 s52, s52, {WS_XM}")
        self.srd(44, 22, "s52", 128)
        self.srd(32, 22, WS_WB, 4096)
        a(f"""
        v_lshlrev_b32 v10, 11, v1
        v_lshl_add_u32 v10, v2, 3, v10
        v_lshlrev_b32 v11, 2, v1
        s_mov_b32 s53, 32768
        s_lshl_b32 s52, s3, 10
        v_lshlrev_b32 v12, 4, v0
        v_add_u32 v12, s52, v12
        s_lshr_b32 s54, s3, 1
        s_lshl_b32 s54, s54, 7
        s_add_u32 s52, s52, s54
        s_add_u32 m0, s52, {LB}
        s_nop 0
        buffer_load_dwordx4 v12, s[32:35], 0 offen lds
        """)
        for j in range(4):
            for tb in range(2):
                r = 148 + 2 * (j * 2 + tb)
                a(f"buffer_load_dwordx2 a[{r}:{r+1}], v10, s[40:43], {'s53' if tb else '0'} offen offset:{32*j}")
        a("buffer_load_dword a164, v11, s[44:47], 0 offen\nbuffer_load_dword a165, v11, s[44:47], 0 offen offset:64")
        self.emit(lp.prologue_dma())
    def p3_setup(self):
        a = self.a; ACC = 32; LB = LDS_A + 65536
        self.w64_dmaoff(4, 10)
        self.w64_trbase()
        self.x_setup(WS_OT, "s_lshl_b32 s56, s26, 2\ns_add_u32 s56, s56, s3\ns_mov_b32 s52, s56", 1, 65536)
        a(f"""
        v_and_b32 v9, 1, v0
        v_mul_u32_u24 v9, 2176, v9
        v_lshl_add_u32 v9, v2, 4, v9
        v_add_u32 v9, {LB}, v9
        v_lshlrev_b32 v14, 4, v0
        """)
        a(f"s_lshl_b32 s52, s56, 16\ns_lshl_b32 s53, s27, 12\ns_add_u32 s52, s52, s53\ns_add_u32 s52, s52, {WS_HC}")
        self.srd(40, 22, "s52", 4096)
        a(f"s_lshl_b32 s52, s56, 7\ns_lshl_b32 s53, s27, 13\ns_add_u32 s53, s52, s53\ns_add_u32 s53, s53, {WS_SSQ}")
        self.srd(44, 22, "s53", 128)
        a(f"s_add_u32 s52, s52, {WS_HM}\ns_cmp_eq_u32 s27, 0\ns_cselect_b32 s53, 128, 0")
        self.srd(32, 22, "s52", "s53")
        for i in range(16):
            a(f"v_accvgpr_read_b32 v15, a{148+i}\nv_lshlrev_b32 v{ACC+2*i}, 16, v15\nv_and_b32 v{ACC+2*i+1}, 0xffff0000, v15")
        a("v_accvgpr_read_b32 v24, a164\nv_accvgpr_read_b32 v25, a165")
        for r in range(8): a(f"v_mov_b32 v{ACC+32+r}, 0")
    def p3_main(self):
        a = self.a; lp = self.lp3; ACC = 32; NTB = 2
        self.emit(lp.prologue_x())
        self.emit(lp.start())
        self.stamp()
        self.emit(lp.loop("P3_loop"))
        acc = lambda j, tb, r: ACC + (j * NTB + tb) * 4 + r
        for tb in range(2):
            a(f"v_add_f32 v{24+tb}, v{24+tb}, v{acc(4,tb,0)}\nv_add_f32 v{24+tb}, v{24+tb}, v{acc(4,tb,1)}")
        for j in range(4):
            t = 72 + 4 * j
            for tb in range(2):
                for r in range(4): a(f"v_sub_f32 v{acc(j,tb,r)}, v{acc(j,tb,r)}, v{24+tb}")
                for p in range(2): a(f"v_cvt_pk_bf16_f32 v{t+2*tb+p}, v{acc(j,tb,2*p)}, v{acc(j,tb,2*p+1)}")
            a(f"v_permlane16_swap_b32 v{t}, v{t+2}\nv_permlane16_swap_b32 v{t+1}, v{t+3}")
            a(f"buffer_store_dwordx4 v[{t}:{t+3}], v14, s[40:43], 0 offen offset:{1024*j} sc1")
        for tb in range(2):
            for j in range(4):
                for r in range(4):
                    x = acc(j, tb, r)
                    a(f"v_mul_f32 v{26+tb}, v{x}, v{x}" if j == 0 and r == 0 else f"v_fmac_f32 v{26+tb}, v{x}, v{x}")
            self.red16_32(26 + tb, 28, "v_add_f32")
        a("""
        v_and_b32 v28, 1, v2
        v_cmp_eq_u32 vcc, 1, v28
        v_cndmask_b32 v26, v26, v27, vcc
        v_cndmask_b32 v24, v24, v25, vcc
        v_lshlrev_b32 v28, 2, v0
        buffer_store_dword v26, v28, s[44:47], 0 offen sc1
        buffer_store_dword v24, v28, s[32:35], 0 offen sc1
        """)

    def p4_setup(self, R=4, L=2, XD=2, U=4, BP=1):
        a = self.a
        NTB, NFB, XS, WR = 4, 14, 4, 4
        SS = 16896; ACC = 32; AX = 0; AW = 64
        nbase = (R + 2) // 3
        a(f"s_mul_i32 s52, s25, 224\ns_sub_u32 s53, {1024*7168}, s52")
        self.srd(28, 12, "s52", "s53")
        a(f"""
        s_add_u32 s32, s14, s52
        s_addc_u32 s33, s15, 0
        s_sub_u32 s32, s32, 2048
        s_subb_u32 s33, s33, 0
        s_add_u32 s34, s53, 2048
        s_mov_b32 s35, {SRD3}
        s_mul_i32 s52, s3, 57344
        """)
        for i in range(2):
            a(f"""
            v_add_u32 v10, {64*i}, v0
            v_mul_u32_u24 v11, 4682, v10
            v_lshrrev_b32 v11, 16, v11
            v_mul_u32_u24 v12, 14, v11
            v_sub_u32 v12, v10, v12
            v_mul_u32_u24 v{5+i}, 7168, v11
            v_lshl_add_u32 v{5+i}, v12, 4, v{5+i}
            v_add_u32 v{5+i}, s52, v{5+i}
            """)
        a(f"""
        v_subrev_u32 v6, 1024, v6
        v_mov_b32 v10, 0x7f000000
        v_cmp_gt_u32 vcc, 48, v0
        v_cndmask_b32 v6, v10, v6, vcc
        s_mul_i32 s48, s3, 4224
        s_add_u32 s48, s48, {LDS_B}
        s_mov_b32 s49, 0
        """)
        def dma_ops(u):
            return (f"s_add_u32 m0, s48, {(u % R) * SS}",
                    ["buffer_load_dwordx4 v5, s[28:31], s49 offen lds",
                     "buffer_load_dwordx4 v6, s[28:31], s49 offen offset:1024 lds",
                     "buffer_load_dwordx4 v5, s[32:35], s49 offen offset:2048 lds",
                     "buffer_load_dwordx4 v6, s[32:35], s49 offen offset:3072 lds"],
                    [f"s_add_u32 s49, s49, {32*7168}"])
        def frag_ops(s, j, slot):
            sl = s % R; mt, jj = divmod(j, 7); r = AW + 4 * slot
            off = (sl % 3) * SS + mt * 2048 + jj * 32
            return [f"ds_read_b64_tr_b16 a[{r}:{r+1}], v{7 + sl//3} offset:{off}", f"ds_read_b64_tr_b16 a[{r+2}:{r+3}], v{7 + sl//3} offset:{off+896}"]
        def mfma(s, j, tb, slot):
            d = ACC + (j * NTB + tb) * 4; xr = AX + (s % XS) * 16 + 4 * tb
            return f"v_mfma_f32_16x16x32_bf16 v[{d}:{d+3}], a[{AW+4*slot}:{AW+4*slot+3}], a[{xr}:{xr+3}], v[{d}:{d+3}]"
        self.lp4 = lp = Loop(NTB, NFB, 32, 1, R, L, XD, XS, 3, WR, U, BP, self.x_ops_fn(NTB, AX, XS, 0, " sc1"), dma_ops, frag_ops, mfma)
        self.emit(lp.prologue_dma())
        self.x_setup(WS_HC, "s_lshl_b32 s52, s24, 2\ns_add_u32 s52, s52, s3\ns_lshl_b32 s52, s52, 1", 2, 65536)
        a(f"""
        v_mul_u32_u24 v7, 4224, v2
        v_lshrrev_b32 v10, 2, v1
        v_mul_u32_u24 v10, 224, v10
        v_add_u32 v7, v7, v10
        v_and_b32 v10, 3, v0
        v_lshl_add_u32 v7, v10, 3, v7
        v_add_u32 v7, {LDS_B}, v7
        """)
        for b in range(1, nbase): a(f"v_add_u32 v{7+b}, {3*SS*b}, v7")
        for r in range(224): a(f"v_mov_b32 v{ACC+r}, 0")
        a(f"""
        s_lshl_b32 s52, s24, 2
        s_add_u32 s52, s52, s3
        s_mul_i32 s52, s52, {2*229376}
        s_mul_i32 s53, s25, 7168
        s_add_u32 s52, s52, s53
        s_add_u32 s52, s52, {WS_HH}
        """)
        self.srd(40, 22, "s52", 229376 + 7168)
        self.r4 = self.rstd_loads("s_lshl_b32 s52, s24, 2\ns_add_u32 s52, s52, s3\ns_lshl_b32 s52, s52, 6", 4, 14, 30)
    def p4_main(self):
        a = self.a; lp = self.lp4
        self.emit(lp.prologue_x())
        self.emit(self.r4); lp.note_vm(len(self.r4), ("init", 0))
        self.emit(lp.start())
        self.stamp()
        self.emit(lp.loop("P4_loop"))
        self.stamp()
    def p4_epilogue(self):
        a = self.a; ACC = 32; NTB = 4
        self.rstd_finish(4, 14, 10, 30, scale=-LOG2E)
        a(f"v_lshlrev_b32 v14, 4, v0\ns_mov_b32 s53, 4096\ns_mov_b32 s54, 229376\ns_mov_b32 s55, {229376+4096}")
        acc = lambda j, tb, r: ACC + (j * NTB + tb) * 4 + r
        n = 0
        for pr in range(2):
            for jj in range(7):
                t = 16 + 4 * (n % 4); n += 1
                el = [(acc(jj, tb, r), acc(7 + jj, tb, r), 10 + tb) for tb in (2 * pr, 2 * pr + 1) for r in range(4)]
                for g, u, s in el: a(f"v_mul_f32 v{g}, v{g}, v{s}")
                for g, u, s in el: a(f"v_exp_f32 v{g}, v{g}")
                for g, u, s in el: a(f"v_add_f32 v{g}, 1.0, v{g}")
                for g, u, s in el: a(f"v_rcp_f32 v{g}, v{g}")
                for g, u, s in el: a(f"v_mul_f32 v{u}, v{u}, v{g}")
                for i in range(4): a(f"v_cvt_pk_bf16_f32 v{t+i}, v{el[2*i][1]}, v{el[2*i+1][1]}")
                a(f"v_permlane16_swap_b32 v{t}, v{t+2}\nv_permlane16_swap_b32 v{t+1}, v{t+3}")
                so = ["0", "s53", "s54", "s55"][2 * pr + jj // 4]
                a(f"buffer_store_dwordx4 v[{t}:{t+3}], v14, s[40:43], {so} offen offset:{1024*(jj%4)} sc1")

    def p5_early(self):
        NTB, NFB, R, XS, WR = 2, 4, 16, 8, 8
        ACC = 32; AX = 0; AW = XS * 8
        per = 16 if self.opt.get("rot5", True) else 0
        self.per5 = per
        def frag_ops(s, j, slot):
            r = AW + 4 * slot; off = LDS_A + (s % R) * 4096
            return [f"ds_read_b64_tr_b16 a[{r}:{r+1}], v{5+j} offset:{off}", f"ds_read_b64_tr_b16 a[{r+2}:{r+3}], v{5+j} offset:{off+512}"]
        def mfma(s, j, tb, slot):
            d = ACC + (j * NTB + tb) * 4; xr = AX + (s % XS) * 8 + 4 * tb
            return f"v_mfma_f32_16x16x32_bf16 v[{d}:{d+3}], a[{AW+4*slot}:{AW+4*slot+3}], a[{xr}:{xr+3}], v[{d}:{d+3}]"
        self.lp5 = lp = Loop(NTB, NFB, 112, 1, R, 10, 6, XS, 6, WR, 16, 4, self.x_ops_fn(NTB, AX, XS, per, " sc1"), self.w64_dma(R, per), frag_ops, mfma)
        self.w64_scalar(16, 3584, per)
        self.w64_dmaoff(4, 5)
        self.emit(lp.prologue_dma())
    def p5_setup(self):
        a = self.a; lp = self.lp5; ACC = 32; HR = 64
        self.w64_trbase()
        self.x_setup(WS_HH, "s_lshl_b32 s56, s26, 2\ns_add_u32 s56, s56, s3\ns_mov_b32 s52, s56", 1, 229376, self.per5)
        a(f"s_lshl_b32 s52, s56, 16\ns_lshl_b32 s53, s27, 12\ns_add_u32 s52, s52, s53\ns_add_u32 s52, s52, {WS_HC}")
        self.srd(40, 22, "s52", 4096)
        a(f"s_lshl_b32 s52, s56, 7\ns_add_u32 s52, s52, {WS_HM}")
        self.srd(32, 22, "s52", 128)
        a("""
        v_lshrrev_b32 v10, 1, v2
        v_and_b32 v11, 1, v2
        v_lshlrev_b32 v12, 9, v10
        v_lshl_add_u32 v12, v1, 4, v12
        v_lshl_add_u32 v12, v11, 3, v12
        v_lshlrev_b32 v13, 2, v1
        v_lshlrev_b32 v15, 11, v1
        v_lshl_add_u32 v15, v11, 5, v15
        v_lshl_add_u32 v15, v10, 4, v15
        """)
        ops = []
        for j in range(4):
            for tb in range(2):
                r = HR + 2 * (j * 2 + tb)
                ops.append(f"buffer_load_dwordx2 v[{r}:{r+1}], v12, s[40:43], 0 offen offset:{1024*j+256*tb} sc1")
        ops += ["buffer_load_dword v80, v13, s[32:35], 0 offen sc1", "buffer_load_dword v81, v13, s[32:35], 0 offen offset:64 sc1"]
        self.r5 = ops + self.rstd_loads("s_lshl_b32 s52, s56, 5", 2, 84, 14)
        for r in range(32): a(f"v_mov_b32 v{ACC+r}, 0")
    def p5_main(self):
        a = self.a; lp = self.lp5; ACC = 32; NTB = 2; HR = 64
        self.emit(lp.prologue_x())
        self.emit(self.r5); lp.note_vm(len(self.r5), ("init", 0))
        a("s_lshl_b32 s52, s56, 16\ns_lshl_b32 s53, s27, 7\ns_add_u32 s52, s52, s53\ns_sub_u32 s53, 65536, s53")
        self.srd(40, 18, "s52", "s53")
        a("s_mov_b32 s53, 32768")
        self.emit(lp.start())
        self.stamp()
        self.emit(lp.loop("P5_loop"))
        self.rstd_finish(2, 84, 82, 14)
        acc = lambda j, tb, r: ACC + (j * NTB + tb) * 4 + r
        n = 0
        for tb in range(2):
            for jp in range(2):
                t = 96 + 4 * n; n += 1
                for h in range(2):
                    j = 2 * jp + h; hr = HR + 2 * (j * 2 + tb); u = 112 + 4 * h
                    for p in range(2): a(f"v_lshlrev_b32 v{u+2*p}, 16, v{hr+p}\nv_and_b32 v{u+2*p+1}, 0xffff0000, v{hr+p}")
                    for r in range(4): a(f"v_add_f32 v{u+r}, v{u+r}, v{80+tb}")
                    for r in range(4): a(f"v_fmac_f32 v{u+r}, v{acc(j,tb,r)}, v{82+tb}")
                    for p in range(2): a(f"v_cvt_pk_bf16_f32 v{t+2*h+p}, v{u+2*p}, v{u+2*p+1}")
                a(f"v_permlane16_swap_b32 v{t}, v{t+2}\nv_permlane16_swap_b32 v{t+1}, v{t+3}")
                a(f"buffer_store_dwordx4 v[{t}:{t+3}], v15, s[40:43], {'s53' if tb else '0'} offen offset:{64*jp}")

    def mega(self):
        a = self.a; o = self.opt
        self.p1()
        self.signal(f"s_lshl_b32 s52, s24, 5\ns_add_u32 s52, s52, s25\ns_lshl_b32 s52, s52, 7\ns_add_u32 s52, s52, {SY_FLAG}", 12, 13)
        self.p3_early()
        self.p2_setup()
        self.wait(f"s_lshl_b32 s52, s24, 5\ns_add_u32 s52, s52, s25\ns_lshl_b32 s52, s52, 7\ns_add_u32 s52, s52, {SY_FLAG - 4096}", 1, 12, 13, skip_if="s_cmp_eq_u32 s24, 0")
        self.p2_halo()
        n = 0
        if o.get("touch_p2", 2) >= 1: self.touch(12, 7340032, 14, 240); n += 1
        if o.get("touch_p2", 2) >= 2: self.touch(14, 7340032, 14, 241); n += 1
        a(f"s_waitcnt vmcnt({n})\ns_barrier")
        self.stamp()
        self.p2_main()
        self.stamp()
        self.signal("s_lshl_b32 s52, s24, 8", 12, 13)
        self.lp3.vm = []; self.lp3.note_vm(1, ("D", 0))
        self.p3_setup()
        self.wait("s_lshr_b32 s52, s26, 1\ns_lshl_b32 s52, s52, 8", 32, 12, 13)
        self.p3_main()
        self.stamp()
        self.signal("s_lshr_b32 s52, s26, 1\ns_lshl_b32 s52, s52, 8\ns_add_u32 s52, s52, 2048", 12, 13)
        self.p4_setup(**o.get("p4", {}))
        if o.get("touch_s3", 1):
            L = a.label("T"); a(f"s_cmp_eq_u32 s3, 0\ns_cbranch_scc1 {L}")
            a(f"s_mul_i32 s52, s2, 3\ns_add_u32 s52, s52, s3\ns_sub_u32 s52, s52, 1\ns_mul_i32 s52, s52, 9600\ns_sub_u32 s57, 7340032, s52\ns_max_i32 s57, s57, 0\ns_min_u32 s57, s57, 9600")
            self.srd(68, 16, "s52", "s57")
            a(f"v_lshlrev_b32 v9, 7, v0\ns_mov_b32 s52, 8192\nbuffer_load_dword v31, v9, s[68:71], 0 offen\nbuffer_load_dword v31, v9, s[68:71], s52 offen\n{L}:")
        self.wait("s_lshl_b32 s52, s24, 8\ns_add_u32 s52, s52, 2048", 32, 12, 13)
        self.p4_main()
        self.p5_early()
        self.p4_epilogue()
        self.stamp()
        self.signal("s_lshl_b32 s52, s24, 8\ns_add_u32 s52, s52, 4096", 12, 13)
        self.lp5.vm = []; self.lp5.note_vm(1, ("D", 0))
        self.p5_setup()
        self.wait("s_lshr_b32 s52, s26, 1\ns_lshl_b32 s52, s52, 8\ns_add_u32 s52, s52, 4096", 32, 16, 17)
        self.p5_main()
        self.stamp()

HEADER = open("cdna_kernels/" + KNAME + ".s.ref").read().split("; Override")[0]

def build_file(timers=False, **opt):
    hdr = HEADER; body = TARGET
    for i, (p, lds, nv, na) in enumerate([("p0", 256, 256 if timers else 104, 0), ("mega", LDS_TOTAL, 256, 168)]):
        name = f"{p}_kernel"
        g = Gen(timers, **opt)
        g.entry(f"{p}_end")
        getattr(g, p)()
        g.dump_timers(i)
        g.a(f"{p}_end:\ns_endpgm")
        hdr += f"; @launch kernel={name} grid=(256,1,1) block=(256,1,1) lds={lds}\n"
        body += kernel_header(name) + g.a.text() + kernel_desc(name, nv, na)
    return hdr + body

if __name__ == "__main__":
    open("mega.s", "w").write(build_file())
    open("mega_t.s", "w").write(build_file(timers=True))
```

```python
import re

class Asm:
    def __init__(self):
        self.lines = []
        self.nlab = 0
    def __call__(self, s):
        for l in s.split("\n"):
            l = l.strip()
            if l:
                self.lines.append(l)
    def label(self, base="L"):
        self.nlab += 1
        return f"{base}_{self.nlab}"
    def text(self, pad=True):
        lines = pad_hazards(self.lines) if pad else self.lines
        return "\n".join(l if l.endswith(":") else "    " + l for l in lines) + "\n"

_REG = re.compile(r"^-?\|?(?:abs\()?([vas])(?:(\d+)|\[(\d+):(\d+)\])\)?\|?$")
def regs_of(tok):
    tok = tok.strip()
    if tok in ("vcc", "vcc_lo", "vcc_hi"): return {("s", "vcc")}
    if tok in ("exec", "exec_lo", "exec_hi"): return {("s", "exec")}
    if tok == "m0": return {("s", "m0")}
    m = _REG.match(tok)
    if not m: return set()
    k = m.group(1)
    if m.group(2) is not None: return {(k, int(m.group(2)))}
    return {(k, i) for i in range(int(m.group(3)), int(m.group(4)) + 1)}

TRANS = ("v_exp_f32", "v_log_f32", "v_rcp_f32", "v_rsq_f32", "v_sqrt_f32", "v_sin_f32", "v_cos_f32", "v_rcp_iflag_f32")
class Ins:
    __slots__ = ("txt", "op", "kind", "rd", "wr", "nop", "srcC", "passes", "store_data", "lds_dma", "dpp")
    def __init__(self, txt):
        self.txt = txt
        body = txt.split(";")[0].strip()
        self.rd, self.wr, self.srcC, self.store_data = set(), set(), set(), set()
        self.nop = 1; self.passes = 0; self.lds_dma = False; self.dpp = False
        if body.endswith(":") or not body or body.startswith("."):
            self.kind = "label"; self.op = ""; self.nop = 0; return
        parts = body.split(None, 1)
        op = parts[0]; self.op = op
        rest = parts[1] if len(parts) > 1 else ""
        rest = re.sub(r"(op_sel_hi|op_sel|neg_lo|neg_hi|quad_perm):\[[^\]]*\]", r"\1", rest)
        toks = [t.strip() for t in rest.split(",")] if rest else []
        mods = ""
        if toks:
            sp = toks[-1].split(None, 1)
            toks[-1] = sp[0]
            mods = sp[1] if len(sp) > 1 else ""
        R = [regs_of(t) for t in toks]
        base = re.sub(r"_(e32|e64|dpp|sdwa)$", "", op)
        if op == "s_nop":
            self.kind = "nop"; self.nop = int(toks[0], 0) + 1
        elif op.startswith("v_mfma"):
            self.kind = "mfma"
            self.wr = R[0]; self.rd = R[1] | R[2] | R[3]; self.srcC = R[3]
            self.passes = 8 if "32x32" in op else 4
        elif op.startswith("v_"):
            self.kind = "trans" if base in TRANS else "valu"
            self.dpp = op.endswith("_dpp") or "row_" in mods or "quad_perm" in mods
            if op.startswith("v_permlane") and "swap" in op:
                self.kind = "permlane"; self.wr = R[0] | R[1]; self.rd = R[0] | R[1]
            elif base in ("v_readfirstlane_b32", "v_readlane_b32"):
                self.kind = "readlane"; self.wr = R[0]; self.rd = set().union(*R[1:])
            elif op.startswith("v_cmpx"):
                self.wr = R[0] | {("s", "exec")}; self.rd = set().union(*R[1:])
            elif base in ("v_add_co_u32", "v_sub_co_u32", "v_addc_co_u32", "v_subb_co_u32"):
                self.wr = R[0] | R[1]; self.rd = set().union(*R[2:])
            else:
                self.wr = R[0]; self.rd = set().union(*R[1:]) if len(R) > 1 else set()
                if base in ("v_fmac_f32", "v_dot2c_f32_bf16", "v_writelane_b32"): self.rd |= R[0]
        elif op.startswith("ds_"):
            self.kind = "ds"
            if "read" in op or "bpermute" in op or "swizzle" in op:
                self.wr = R[0]; self.rd = set().union(*R[1:])
            else:
                self.rd = set().union(*R)
        elif op.startswith(("buffer_", "global_")):
            self.kind = "vmem"
            allm = mods.split()
            if op in ("buffer_wbl2", "buffer_inv"):
                pass
            elif "lds" in allm or "_lds_" in op:
                self.lds_dma = True; self.rd = set().union(*R) | {("s", "m0")}
            elif "load" in op:
                self.wr = R[0]; self.rd = set().union(*R[1:])
            elif "atomic" in op:
                self.rd = set().union(*R)
                if "sc0" in allm: self.wr = R[0]
            else:
                self.rd = set().union(*R)
                d = R[0] if op.startswith("buffer_") else R[1]
                if len(d) >= 3: self.store_data = d
        elif op.startswith("s_"):
            self.kind = "salu"
            if op.startswith(("s_cmp", "s_cbranch", "s_branch", "s_waitcnt", "s_barrier", "s_endpgm", "s_sleep", "s_setprio", "s_bitcmp")):
                self.rd = set().union(*R) if R else set()
            else:
                self.wr = R[0] if R else set(); self.rd = set().union(*R[1:]) if len(R) > 1 else set()
                if "saveexec" in op: self.wr |= {("s", "exec")}
        else:
            raise ValueError("unknown instruction " + txt)

VALU_KINDS = ("valu", "trans", "permlane", "readlane")
def need(p, c):
    n = 0
    vw = {r for r in p.wr if r[0] in "va"}
    sw = {r for r in p.wr if r[0] == "s"}
    if p.kind in VALU_KINDS:
        if c.kind == "mfma" and vw & c.rd: n = max(n, 2)
        if c.kind == "permlane" and vw & c.rd: n = max(n, 2)
        if c.kind == "readlane" and vw & c.rd: n = max(n, 1)
        if c.dpp and vw & c.rd: n = max(n, 2)
        if p.kind == "trans" and c.kind in VALU_KINDS + ("mfma",) and vw & c.rd: n = max(n, 1)
        if sw:
            if c.kind == "vmem" and sw & c.rd: n = max(n, 5)
            if c.kind in VALU_KINDS and sw & c.rd: n = max(n, 4 if c.kind == "readlane" else 2)
            if c.kind == "valu" and c.op.startswith("v_cndmask") and sw & c.rd: n = max(n, 2)
            if c.kind == "salu" and sw & c.rd: n = max(n, 1)
            if ("s", "exec") in sw and c.kind in ("mfma", "permlane", "readlane"): n = max(n, 4)
            if ("s", "exec") in sw and c.dpp: n = max(n, 5)
    if p.kind == "mfma":
        big = {4: 8, 8: 12}[p.passes]; ovl = {4: 6, 8: 10}[p.passes]; war = {4: 3, 8: 7}[p.passes]
        if c.kind == "mfma":
            ab = c.rd - c.srcC if not (c.srcC & (c.rd - c.srcC)) else c.rd
            if p.wr & (c.rd - c.srcC): n = max(n, big)
            if p.wr & c.srcC and not (p.wr == c.srcC and p.passes == c.passes): n = max(n, ovl)
            if p.wr & c.wr and not (p.wr == c.srcC): n = max(n, big)
        elif c.kind in VALU_KINDS:
            if p.wr & (c.rd | c.wr): n = max(n, big)
            if p.srcC & c.wr: n = max(n, war)
        elif c.kind in ("ds", "vmem"):
            if p.wr & (c.rd | c.wr): n = max(n, big)
            if p.srcC & c.wr: n = max(n, war)
    if p.kind == "vmem" and p.store_data:
        if p.store_data & c.wr: n = max(n, 2)
    if p.kind == "salu" and ("s", "m0") in p.wr and c.lds_dma: n = max(n, 1)
    return n

def pad_hazards(lines, window=14):
    out = []
    for l in lines:
        c = Ins(l)
        if c.kind not in ("label", "nop"):
            dist = 0; worst = 0
            for p in reversed(out):
                if dist >= window: break
                if p.kind not in ("label", "nop"):
                    worst = max(worst, need(p, c) - dist)
                dist += p.nop
            if worst > 0:
                out.append(Ins(f"s_nop {worst-1}"))
        out.append(c)
    return [i.txt for i in out]

def sprinkle(main, groups, start=0, stop=None):
    stop = len(main) if stop is None else stop
    n = len(groups); out = list(main[:start]); k = 0
    span = stop - start
    for i in range(start, len(main)):
        out.append(main[i])
        while k < n and i < stop and (i - start + 1) * (n + 1) >= (k + 1) * span:
            out += groups[k]; k += 1
    assert k == n
    return out

def check_trace(lines, window=14):
    padded = pad_hazards(lines, window)
    assert len(padded) == len(lines), "hazard across a loop back edge"

def kernel_header(name):
    return f""".text
.globl {name}
.p2align 8
.type {name},@function
{name}:
"""

def kernel_desc(name, vgpr, agpr=0, sgpr=102, wgy=False):
    acc = (vgpr + 3) // 4 * 4
    if acc < 4: acc = 4
    nfv = acc + agpr if agpr else vgpr
    s = f""".section .rodata,"a"
.p2align 6
.amdhsa_kernel {name}
  .amdhsa_next_free_vgpr {nfv}
  .amdhsa_next_free_sgpr {sgpr}
  .amdhsa_accum_offset {acc}
  .amdhsa_group_segment_fixed_size 0
  .amdhsa_kernarg_size 80
  .amdhsa_user_sgpr_count 2
  .amdhsa_user_sgpr_kernarg_segment_ptr 1
  .amdhsa_system_sgpr_workgroup_id_x 1
"""
    if wgy:
        s += "  .amdhsa_system_sgpr_workgroup_id_y 1\n"
    s += "  .amdhsa_float_denorm_mode_32 3\n"
    s += ".end_amdhsa_kernel\n"
    return s

TARGET = '.amdgcn_target "amdgcn-amd-amdhsa--gfx950"\n'
```

```python
import re
from asmlib import check_trace, pad_hazards

class Loop:
    def __init__(self, NTB, NFB, NST, SK, R, L, XD, XS, LA, WR, U, BP,
                 x_ops, dma_ops, frag_ops, mfma, iter_ops=(), pre=None, x0=None, cap=99, extra=None, cnt="s51", clip=False, wait2=False, pair=False, xfrag=None, cap0=None):
        self.__dict__.update(locals())
        assert NST % U == 0 and (U == NST or (U % (R * SK) == 0 and U % XS == 0 and (U * NFB) % WR == 0))
        assert XD < XS and LA < WR and BP % SK == 0 and U % BP == 0 and NST // U >= 1
        if pre is None: self.pre = L
        if x0 is None: self.x0 = XD
        assert self.pre <= R and ((self.pre == L and self.x0 == XD and not clip) or NST == U)
        self.vm = []
        self.ds = []
        self.last_bar = None
        self.cur_s0 = 0
        self.nx = self.x0
        self.nd = self.pre * SK
        self.queue = []
        self.ds_done = 0
        self.e_count = 8; self.e_shared = False; self.ds_done_bar = 0
        self.e_frees = None

    def _x(self, s):
        l, post = self.x_ops(s)
        return [(t if isinstance(t, tuple) else (s, t)) for t in l], post
    def _item(self, t):
        if not isinstance(t, tuple): return [], t, "D"
        return ([t[0]] if t[0] else []), t[1], (t[2] if len(t) > 2 else "D")
    def _vwait(self, tags):
        idx = [i for i, t in enumerate(self.vm) if t in tags]
        if not idx: return None
        return len(self.vm) - 1 - max(idx)
    def prologue_dma(self, lo=0, hi=None):
        out = []
        for u in range(lo, self.pre if hi is None else hi):
            m0, lds, post = self.dma_ops(u)
            out.append(m0)
            for t in lds:
                pre, line, tag = self._item(t)
                out += pre + [line]; self.vm.append((tag, u))
            out += post
        return out
    def prologue_x(self):
        out = []
        for s in range(self.x0):
            lds, post = self._x(s)
            out += [t for _, t in lds]; out += post
            self.vm += [("X", q) for q, _ in lds]
        return out
    def prologue_mixed(self):
        out = []
        for i in range(max(self.pre, self.x0)):
            if i < self.x0:
                lds, post = self._x(i); out += [t for _, t in lds] + post; self.vm += [("X", q) for q, _ in lds]
            if i < self.pre:
                m0, lds, post = self.dma_ops(i); out += [m0] + lds + post; self.vm += [("D", i)] * len(lds)
        return out
    def note_vm(self, n, tag=("other", 0)):
        self.vm += [tag] * n
    def start(self):
        out = []
        n = self._vwait({("D", u) for u in range(self.BP // self.SK)})
        out += [f"s_waitcnt vmcnt({min(n, 63)})", "s_barrier"]
        self.last_bar = -self.LA
        for gb in range(self.LA):
            s, j = divmod(gb, self.NFB)
            ops = self.frag_ops(s, j, gb % self.WR)
            out += ops; self.ds += [gb] * len(ops)
            if gb == 0 and self.xfrag:
                for q, t in self.xfrag(-1): out.append(t); self.ds.append(("x", q))
        return out

    def _plan(self, s):
        SK = self.SK
        xs, dsq = [], []
        while self.nx <= s + self.XD and not self.xfrag:
            if not (self.clip and self.nx >= self.NST):
                l, post = self._x(self.nx)
                for i, (q, t) in enumerate(l): xs.append(([], "X", q, t, post if i == len(l) - 1 else []))
            self.nx += 1
        while self.nd <= s + self.L * SK:
            u, part = divmod(self.nd, SK)
            if not (self.clip and u * SK >= self.NST):
                m0, dl, post = self.dma_ops(u)
                lo, hi = len(dl) * part // SK, len(dl) * (part + 1) // SK
                for i in range(lo, hi):
                    pre, t, tag = self._item(dl[i])
                    if i == 0 and not isinstance(dl[i], tuple): pre = [m0]
                    own = list(dl[i][3]) if isinstance(dl[i], tuple) and len(dl[i]) > 3 else []
                    dsq.append((pre, tag, u, t, own + (post if i == len(dl) - 1 else [])))
            self.nd += 1
        while xs or dsq:
            if xs and (not dsq or len(xs) >= len(dsq)): self.queue.append(xs.pop(0))
            else: self.queue.append(dsq.pop(0))
        if self.cap < 99 and not self.xfrag:
            self.queue.sort(key=lambda it: it[2] - (it[2] % 2) if it[1] == "X" else it[2] * SK - 1.5 if it[1] == "D" else (it[2] + 1) * SK - 1.4)
        cap = self.cap0 if s == 0 and self.cap0 else self.cap
        take, self.queue = self.queue[:cap], self.queue[cap:]
        return take

    def _body(self, s0):
        NTB, NFB, SK, R, L, XD, LA, WR, BP = self.NTB, self.NFB, self.SK, self.R, self.L, self.XD, self.LA, self.WR, self.BP
        out = []
        sched = {}
        self.cur_s0 = s0
        slots = NFB * NTB
        for su in range(self.U):
            s = s0 + su
            seq = self._plan(s)
            n = len(seq)
            for i, (pre, tag, q, t, post) in enumerate(seq):
                if not (self.pair and tag == "X" and q % 2 == 1 and i > 0): pos = (i * slots + slots // 2) // n
                lst = sched.setdefault((s, pos), [])
                for m0 in pre:
                    prev = sched.get((s, pos - 1), [])
                    if pos == 0 or any(x[0] in ("D", "E") for x in lst): lst.append(("s", 0, m0)); lst.append(("s", 0, "s_nop 0"))
                    else: sched.setdefault((s, pos - 1), []).append(("s", 0, m0))
                lst.append((tag, q, t))
                nxt_same = [k for k in range(i + 1, n) if seq[k][1] == tag]
                p2 = min(pos + 1, slots - 1)
                if nxt_same and (nxt_same[0] * slots + slots // 2) // n <= p2: p2 = pos
                for x in post: sched.setdefault((s, p2), []).append(("s", 0, x))
            if self.extra:
                for pos, tag, t in self.extra(s, su): sched.setdefault((s, pos), []).append((tag, 0, t))
        for su in range(self.U):
            s = s0 + su
            for j in range(NFB):
                gb = s * NFB + j
                wv = None
                if j == 0 and not self.xfrag:
                    assert ("X", s) in self.vm, ("X not issued", s)
                    wv = self._vwait({("X", s)})
                nxt = gb + LA
                bar = nxt % (NFB * BP) == 0
                if self.clip and nxt >= self.NST * NFB: bar = False
                if bar:
                    s1 = nxt // NFB
                    need = range(s1 // SK, (s1 + BP) // SK)
                    for u in need:
                        assert u < self.pre or self.vm.count(("D", u)) == sum(self._item(t)[2] == "D" for t in self.dma_ops(u)[1]), ("DMA not issued", u, s)
                    if self.xfrag:
                        for u in need: assert self.vm.count(("E", u - 1)) == self.e_count, ("x DMA not issued", u, s)
                    w2 = self._vwait({("D", u) for u in need} | {("E", u - 1) for u in need})
                    if w2 is None: w2 = 63
                    wv = w2 if wv is None else min(wv, w2)
                wl = None
                self.ds_done_prev = self.ds_done
                if not self.wait2 or gb % 2 == 0:
                    last = gb + 1 if self.wait2 and (gb + 1) in self.ds else gb
                    idx = max(i for i, t in enumerate(self.ds) if t == last)
                    if j == 0 and self.xfrag: idx = max(idx, max(i for i, t in enumerate(self.ds) if t == ("x", s)))
                    wl = len(self.ds) - 1 - idx
                    self.ds_done = max(self.ds_done, idx + 1)
                    assert wl <= 15, wl
                if wv is not None: wv = min(wv, 63)
                if bar:
                    out.append(f"s_waitcnt vmcnt({wv})"); out.append("s_barrier")
                    if wl is not None: out.append(f"s_waitcnt lgkmcnt({wl})")
                    self.last_bar = gb; self.ds_done_bar = self.ds_done_prev
                elif wv is not None and wl is not None: out.append(f"s_waitcnt vmcnt({wv}) lgkmcnt({wl})")
                elif wv is not None: out.append(f"s_waitcnt vmcnt({wv})")
                elif wl is not None: out.append(f"s_waitcnt lgkmcnt({wl})")
                s2, j2 = divmod(nxt, NFB)
                fr = self.frag_ops(s2, j2, nxt % WR)
                if self.clip and s2 >= self.NST: fr = []
                xf = []
                if self.xfrag:
                    allx = self.xfrag(s); j0 = NFB - LA; nb = LA if len(allx) > 4 else max(LA - 1, 1)
                    if j0 <= j < j0 + nb: xf = allx[(j - j0) * len(allx) // nb:(j - j0 + 1) * len(allx) // nb]
                for tb in range(NTB):
                    out.append(self.mfma(s, j, tb, gb % WR))
                    k = (len(fr) + (NTB - tb) - 1) // (NTB - tb)
                    oth = sched.get((s, j * NTB + tb), [])
                    if oth and tb < NTB - 1 and len(fr) <= NTB - tb - 1: k = 0
                    for _ in range(k):
                        out.append(fr.pop(0)); self.ds.append(nxt)
                    if xf and (k == 0 and not oth or NTB - 1 - tb < len(xf)):
                        q, t = xf.pop(0); out.append(t); self.ds.append(("x", q))
                    for tag, ss, t in oth:
                        if tag.startswith("W:"):
                            w = self._vwait({(tag[2:], 0)})
                            out.append(f"s_waitcnt vmcnt({min(w, 63)})"); continue
                        out.append(t)
                        if tag == "D":
                            old_last = (ss - R + 1) * SK * NFB - 1
                            assert ss - R < 0 or old_last < self.last_bar, ("ring WAR", s, j, ss, self.last_bar)
                        if tag == "X":
                            assert ss - self.XS < s, ("X set WAR", s, ss)
                        if tag == "E":
                            for q in self.e_frees(ss):
                                if q >= 0: assert ("x", q) in self.ds and max(i for i, z in enumerate(self.ds) if z == ("x", q)) < (self.ds_done_bar if self.e_shared else self.ds_done), ("x ring WAR", s, j, ss, q)
                        if tag in ("D", "E", "X"): self.vm.append((tag, ss))
                        if tag.startswith("V:"): self.vm.append((tag[2:], 0))
        return out

    def loop(self, label):
        n = self.NST // self.U
        bodies = [self._body(i * self.U) for i in range(min(n, 3))]
        b = bodies[0]
        for o in bodies[1:]:
            assert len(o) == len(b)
            for i, (x, y) in enumerate(zip(b, o)):
                if x != y:
                    px, py = re.findall(r"\d+", x), re.findall(r"\d+", y)
                    assert x.startswith("s_waitcnt") and re.sub(r"\d+", "", x) == re.sub(r"\d+", "", y), (x, y)
                    mins = iter([str(min(int(p), int(q))) for p, q in zip(px, py)])
                    b[i] = re.sub(r"\d+", lambda m: next(mins), x)
        if n == 1:
            return b
        tail = list(self.iter_ops) + [f"s_sub_u32 {self.cnt}, {self.cnt}, 1", f"s_cmp_lg_u32 {self.cnt}, 0"]
        mf = [i for i, x in enumerate(b) if x.startswith("v_mfma")]
        body = list(b)
        salu_scc = [i for i, x in enumerate(b) if x.startswith(("s_add", "s_sub", "s_and", "s_cselect", "s_cmp"))]
        last_scc = max(salu_scc) if salu_scc else -1
        cand = [i for i in mf if i > last_scc]
        if len(cand) > len(tail) and not self.iter_ops:
            for k, t in enumerate(reversed(tail)):
                body.insert(cand[-1 - k - 1] + 1, t)
        else:
            body += tail
        body = pad_hazards(body)
        check_trace(body + [f"s_cbranch_scc1 {label}"] + body)
        return [f"s_mov_b32 {self.cnt}, {n}", f"{label}:"] + body + [f"s_cbranch_scc1 {label}"]
```

```python
import sys, math, struct
from asmlib import *
from gemm import Loop

KNAME = "sequential_preLN__sliding_block__glu_gated_glu__prompt"
MB = 1 << 20
WS_XN, WS_QF, WS_KF, WS_VF, WS_OT, WS_HC = 0, 4*MB, 8*MB, 12*MB, 16*MB, 20*MB
WS_HH = 24*MB
WS_XM = 40*MB
WS_RS = WS_XM + 8192
WS_WB = WS_RS + 8192
WS_SSQ = WS_WB + 8192
WS_SY = 41*MB
SY_FLAG = 8192
SY_SIZE = SY_FLAG + 256 * 128
WS_TM = 48*MB
SRD3 = "0x00020000"
LOG2E = 1.4426950408889634
LDS_A = 0
LDS_B = 65536
LDS_KV = 43008
LDS_X = LDS_KV + 98304
LDS_WB = LDS_X + 16384
LDS_TOTAL = 163840
WS_XC = 0
WS_KV = 8*MB
def f2h(x): return "0x%08x" % struct.unpack("<I", struct.pack("<f", x))[0]

class Gen:
    def __init__(self, timers=False, rot=True, **opt):
        self.a = Asm(); self.timers = timers; self.rot = rot; self.nt = 0; self.opt = opt; self.names = []
    def entry(self, end):
        self.a(f"""
        s_cmp_ge_u32 s2, 256
        s_cbranch_scc1 {end}
        s_load_dwordx16 s[4:19], s[0:1], 0
        s_load_dwordx4 s[20:23], s[0:1], 64
        v_lshrrev_b32 v3, 6, v0
        v_and_b32 v0, 63, v0
        v_readfirstlane_b32 s3, v3
        v_and_b32 v1, 15, v0
        v_lshrrev_b32 v2, 4, v0
        s_and_b32 s52, s2, 7
        s_lshr_b32 s53, s2, 3
        s_and_b32 s54, s53, 3
        s_lshr_b32 s55, s53, 2
        s_and_b32 s24, s52, 4
        s_add_u32 s24, s24, s54
        s_and_b32 s25, s52, 3
        s_lshl_b32 s25, s25, 3
        s_add_u32 s25, s25, s55
        s_lshr_b32 s26, s52, 1
        s_lshl_b32 s26, s26, 2
        s_add_u32 s26, s26, s54
        s_and_b32 s27, s52, 1
        s_lshl_b32 s56, s55, 1
        s_add_u32 s27, s27, s56
        s_lshl_b32 s54, s54, 1
        s_add_u32 s58, s54, s55
        s_and_b32 s58, s58, 7
        """)
        self.stamp("entry")
        self.a(f"""
        s_or_b32 s52, s2, s3
        s_cbranch_scc1 E_notag
        s_memrealtime s[52:53]
        s_waitcnt lgkmcnt(0)
        s_or_b32 s52, s52, 1
        v_mov_b32 v4, s52
        v_lshlrev_b32 v5, 20, v0
        s_mov_b32 s72, s20
        s_mov_b32 s73, s21
        s_mov_b32 s74, 4
        s_mov_b32 s75, {SRD3}
        buffer_store_dword v4, v5, s[72:75], 0 offen sc1
        E_notag:
        """)
        self.a("s_waitcnt lgkmcnt(0)")
        self.stamp("_karg")
    def stamp(self, name="x"):
        if self.timers and (self.timers is True and name[0] != "_" or self.timers is not True and name in self.timers):
            assert self.nt < 13
            self.names.append(name)
            self.a(f"{'s_memrealtime' if self.opt.get('rt') else 's_memtime'} s[{76+2*self.nt}:{77+2*self.nt}]"); self.nt += 1
    def dump_timers(self, slot):
        if not self.timers: return
        a = self.a
        a(f"""
        s_waitcnt lgkmcnt(0)
        s_lshl_b32 s52, s2, 2
        s_add_u32 s52, s52, s3
        s_lshl_b32 s52, s52, 6
        s_add_u32 s52, s52, {WS_TM + slot*65536}
        s_add_u32 s72, s22, s52
        s_addc_u32 s73, s23, 0
        s_mov_b32 s74, 64
        s_mov_b32 s75, {SRD3}
        v_lshlrev_b32 v254, 6, v0
        """)
        for i in range(self.nt):
            a(f"v_mov_b32 v255, s{76+2*i}\nbuffer_store_dword v255, v254, s[72:75], 0 offen offset:{4*i}")
        self.nt = 0
    def srd(self, d, ptr, off, size):
        a = self.a
        if off == 0: a(f"s_mov_b32 s{d}, s{ptr}\ns_mov_b32 s{d+1}, s{ptr+1}")
        else: a(f"s_add_u32 s{d}, s{ptr}, {off}\ns_addc_u32 s{d+1}, s{ptr+1}, 0")
        a(f"s_mov_b32 s{d+2}, {size}\ns_mov_b32 s{d+3}, {SRD3}")
    def red16_32(self, v, t, op):
        self.a(f"""
        v_mov_b32 v{t}, v{v}
        v_permlane16_swap_b32 v{t}, v{v}
        {op} v{v}, v{t}, v{v}
        v_mov_b32 v{t}, v{v}
        v_permlane32_swap_b32 v{t}, v{v}
        {op} v{v}, v{t}, v{v}
        """)
    def capture(self, fn, *args, **kw):
        keep = self.a.lines; self.a.lines = []
        fn(*args, **kw)
        out = self.a.lines; self.a.lines = keep
        return out
    def code_touch(self, lo_label, hi_label, wave, va, vd):
        a = self.a; L = a.label("CT"); H = a.label("CTH")
        a(f"""
        s_cmp_lg_u32 s3, {wave}
        s_cbranch_scc1 {L}
        s_getpc_b64 s[72:73]
        {H}:
        s_add_u32 s72, s72, {lo_label}-{H}
        s_addc_u32 s73, s73, ({lo_label}-{H})>>32
        s_lshr_b32 s52, s2, 3
        s_mul_i32 s52, s52, (({hi_label}-{lo_label})/4096+1)
        v_min_u32 v{va}, (({hi_label}-{lo_label})/4096), v0
        v_add_u32 v{va}, s52, v{va}
        v_min_u32 v{va}, (({hi_label}-{lo_label})/128), v{va}
        v_lshlrev_b32 v{va}, 7, v{va}
        v_mov_b32 v{va+1}, s73
        v_add_co_u32 v{va}, vcc, s72, v{va}
        v_addc_co_u32 v{va+1}, vcc, 0, v{va+1}, vcc
        global_load_dword v{vd}, v[{va}:{va+1}], off
        {L}:
        """)
    def emit(self, ops):
        for x in ops: self.a(x)
    def signal(self, off_expr, t0, t1, nm="s", pre=None):
        a = self.a; L = a.label("SIG")
        self.stamp(f"_{nm}a")
        if pre: pre()
        a(f"s_waitcnt vmcnt(0) lgkmcnt(0)")
        self.stamp(f"_{nm}drain")
        a(f"s_barrier\ns_cmp_lg_u32 s3, 0\ns_cbranch_scc1 {L}")
        a(off_expr)
        a(f"v_lshlrev_b32 v{t0}, 20, v0\nv_mov_b32 v{t1}, s10\nbuffer_store_dword v{t1}, v{t0}, s[64:67], s52 offen sc1\n{L}:")
    def wait(self, off_expr, t0, t1, nm="s", n=32):
        a = self.a; L = a.label("WT"); P = a.label("POLL")
        self.stamp(f"_{nm}setup")
        a(f"s_cmp_lg_u32 s3, 0\ns_cbranch_scc1 {L}")
        a(off_expr)
        a(f"""
        v_and_b32 v{t0}, {n-1}, v0
        v_lshlrev_b32 v{t0}, 2, v{t0}
        v_add_u32 v{t0}, s52, v{t0}
        s_mov_b32 s52, 0x40000
        s_sleep {self.opt.get("sl0", 14)}
        {P}:
        s_sleep {self.opt.get("sl1", 6)}
        buffer_load_dword v{t1}, v{t0}, s[64:67], 0 offen sc1
        s_waitcnt vmcnt(0)
        v_cmp_ne_u32 vcc, s10, v{t1}
        s_sub_u32 s52, s52, 1
        s_cbranch_scc1 {L}
        s_cbranch_vccnz {P}
        {L}:
        s_barrier
        """)
        self.stamp(f"_{nm}seen")
    def touch_setup(self, ptr, nbytes, vo):
        per_wave = nbytes // 1024
        assert per_wave <= 8192
        self.a(f"s_lshl_b32 s52, s2, 2\ns_add_u32 s52, s52, s3\ns_mul_i32 s52, s52, {per_wave}")
        self.srd(68, ptr, "s52", per_wave)
        self.a(f"v_lshlrev_b32 v{vo}, 7, v0")
    def touch(self, ptr, nbytes, vo, vd):
        self.touch_setup(ptr, nbytes, vo)
        self.a(f"buffer_load_dword v{vd}, v{vo}, s[68:71], 0 offen")
    def rot_init(self, off, ctr, stride, period, base=None):
        if not self.rot or not period:
            self.a(f"s_mov_b32 {off}, 0"); return
        base = base or f"s{int(ctr[1:])+2}"
        if stride & (stride - 1) == 0: self.a(f"s_mul_i32 {ctr}, s58, {period//8*stride}\ns_mov_b32 {off}, {ctr}\ns_mov_b32 {base}, 0")
        else: self.a(f"s_mul_i32 {ctr}, s58, {period//8}\ns_mul_i32 {off}, {ctr}, {stride}\ns_mov_b32 {base}, 0")
    def rot_next(self, i, off, ctr, stride, period, base=None):
        if not self.rot or not period: return [f"s_add_u32 {off}, {off}, {stride}"]
        base = base or f"s{int(ctr[1:])+2}"
        o = [f"s_add_u32 {base}, {base}, {period*stride}"] if i % period == period - 1 else []
        if stride & (stride - 1) == 0:
            return o + [f"s_add_u32 {ctr}, {ctr}, {stride}", f"s_and_b32 {ctr}, {ctr}, {period*stride-1}", f"s_add_u32 {off}, {ctr}, {base}"]
        return o + [f"s_add_u32 {ctr}, {ctr}, 1", f"s_and_b32 {ctr}, {ctr}, {period-1}", f"s_mul_i32 {off}, {ctr}, {stride}", f"s_add_u32 {off}, {off}, {base}"]
    def x_setup(self, ws_off, blk_expr, nblk, blkbytes, period=0, base=None):
        a = self.a
        a(blk_expr)
        a(f"s_mul_i32 s52, s52, {blkbytes}\ns_add_u32 s52, s52, {ws_off}")
        self.srd(36, 22, "s52", nblk * blkbytes)
        a("v_lshlrev_b32 v3, 9, v2\nv_lshl_add_u32 v3, v1, 4, v3")
        self.rot_init("s50", "s59", 2048, period, base)
        if nblk == 2: a(f"v_add_u32 v4, {blkbytes}, v3")
    def x_ops_fn(self, NTB, AX, XS, period=0, fl="", base=None):
        def x_ops(s):
            st = AX + (s % XS) * 4 * NTB
            l = [f"buffer_load_dwordx4 a[{st+4*tb}:{st+4*tb+3}], v{3 + tb//2}, s[36:39], s50 offen offset:{256*(tb&1)}{fl}" for tb in range(NTB)]
            return l, self.rot_next(s, "s50", "s59", 2048, period, base)
        return x_ops

    def side_loads(self):
        a = self.a
        a("s_lshl_b32 s52, s26, 4\ns_add_u32 s56, s52, s27\ns_lshl_b32 s57, s56, 2\ns_add_u32 s57, s57, s3\ns_lshl_b32 s53, s57, 12")
        self.srd(32, 4, "s53", 4096)
        a("s_lshl_b32 s53, s57, 11")
        self.srd(44, 8, "s53", 2048)
        a("v_lshlrev_b32 v23, 4, v0")
        ops = [f"buffer_load_dwordx4 v[{192+4*i}:{195+4*i}], v23, s[32:35], 0 offen offset:{1024*i}" for i in range(4)]
        ops += [f"buffer_load_dwordx4 v[{208+4*i}:{211+4*i}], v23, s[44:47], 0 offen offset:{1024*i}" for i in range(2)]
        self.srd(64, 22, WS_SY, SY_SIZE)
        a("v_lshlrev_b32 v14, 20, v0")
        return ops
    def side_compute(self):
        def body():
            a = self.a
            A, B, W = 216, 232, 152
            a("W:side")
            for i in range(8):
                for dst, src in ((A, 192), (B, 200), (W, 208)):
                    a(f"v_lshlrev_b32 v{dst+2*i}, 16, v{src+i}\nv_and_b32 v{dst+2*i+1}, 0xffff0000, v{src+i}")
            T = 168
            for k, v in enumerate((A, B, W)):
                t = T + 8 * k
                for i in range(4): a(f"v_pk_add_f32 v[{t+2*i}:{t+2*i+1}], v[{v+2*i}:{v+2*i+1}], v[{v+8+2*i}:{v+9+2*i}]")
            def tree(ts):
                for n in (4, 2):
                    for t in ts:
                        for i in range(0, n, 2): a(f"v_pk_add_f32 v[{t+i}:{t+i+1}], v[{t+i}:{t+i+1}], v[{t+n+i}:{t+n+i+1}]")
                for t in ts: a(f"v_add_f32 v{t}, v{t}, v{t+1}")
                for d in ("quad_perm:[1,0,3,2]", "quad_perm:[2,3,0,1]", "row_half_mirror", "row_mirror"):
                    for t in ts: a(f"v_add_f32_dpp v{t}, v{t}, v{t} {d} row_mask:0xf bank_mask:0xf")
                for h in ("16", "32"):
                    for t in ts: a(f"v_mov_b32 v{t+1}, v{t}")
                    for t in ts: a(f"v_permlane{h}_swap_b32 v{t+1}, v{t}")
                    for t in ts: a(f"v_add_f32 v{t}, v{t+1}, v{t}")
            tree([T, T + 8, T + 16])
            a(f"""
            v_mul_f32 v192, {f2h(1/1024)}, v{T}
            v_mul_f32 v193, {f2h(1/1024)}, v{T+8}
            v_mul_f32 v194, {f2h(1/1024)}, v{T+16}
            """)
            a("v_mov_b32 v198, v193")
            for v, m in ((A, 192), (B, 198)):
                for i in range(8): a(f"v_pk_add_f32 v[{v+2*i}:{v+2*i+1}], v[{v+2*i}:{v+2*i+1}], v[{m}:{m+1}] op_sel_hi:[1,0] neg_lo:[0,1] neg_hi:[0,1]")
            a(f"""
            v_cvt_pk_bf16_f32 v195, v194, v194
            v_lshlrev_b32 v196, 16, v195
            v_sub_f32 v196, v194, v196
            v_cvt_pk_bf16_f32 v196, v196, v196
            s_lshl_b32 s53, s57, 1
            s_add_u32 s53, s53, {WS_WB}
            """)
            self.srd(44, 22, "s53", 2052)
            a("v_lshlrev_b32 v197, 12, v0")
            a("V:st buffer_store_short v195, v197, s[44:47], 0 offen sc1")
            a("V:st buffer_store_short v196, v197, s[44:47], 0 offen offset:2048 sc1")
            for k, v in enumerate((A, B)):
                t = T + 8 * k
                for i in range(4): a(f"v_pk_mul_f32 v[{t+2*i}:{t+2*i+1}], v[{v+2*i}:{v+2*i+1}], v[{v+2*i}:{v+2*i+1}]")
                for i in range(4): a(f"v_pk_fma_f32 v[{t+2*i}:{t+2*i+1}], v[{v+8+2*i}:{v+9+2*i}], v[{v+8+2*i}:{v+9+2*i}], v[{t+2*i}:{t+2*i+1}]")
            tree([T, T + 8])
            a(f"""
            v_cmp_eq_u32 vcc, 1, v0
            v_mov_b32 v198, {f2h(1e-5)}
            s_lshl_b32 s53, s57, 3
            s_add_u32 s53, s53, {WS_XM}
            v_cndmask_b32 v192, v192, v193, vcc
            v_cndmask_b32 v{T}, v{T}, v{T+8}, vcc
            v_fmac_f32 v198, {f2h(1/1024)}, v{T}
            v_rsq_f32 v198, v198
            """)
            self.srd(32, 22, "s53", 8192 + 8)
            a("v_lshrrev_b32 v199, 1, v0\nv_lshlrev_b32 v199, 20, v199\nv_lshl_add_u32 v199, v0, 2, v199\ns_mov_b32 s53, 8192")
            a("V:st buffer_store_dword v192, v199, s[32:35], 0 offen sc1")
            a("V:st buffer_store_dword v198, v199, s[32:35], s53 offen sc1")
        out = []
        for l in self.capture(body):
            if l.startswith("W:"): out.append((l, ""))
            elif l.startswith("V:"): out.append(tuple(l.split(None, 1)))
            else: out.append(("s", l))
        return out

    def p1(self):
        a = self.a; o = self.opt
        LA = o.get('la1', 3)
        NTB, NFB, R, XS, WR = 4, 6, 4, 4, 6 + LA
        US = 24576; ACC = 32; CS = 128; AX = 0; AW = 64; ONE = 152
        XB = 98304; RX = 4
        a("s_lshl_b32 s52, s26, 2\ns_add_u32 s52, s52, s3\ns_lshl_b32 s52, s52, 16")
        self.srd(36, 4, "s52", 65536)
        a(f"""
        v_lshrrev_b32 v12, 3, v0
        v_and_b32 v15, 7, v0
        v_xor_b32 v13, v15, v2
        v_lshlrev_b32 v248, 11, v12
        v_lshl_add_u32 v248, v13, 4, v248
        v_xor_b32 v249, 64, v248
        v_add_u32 v249, {16384 - 1024}, v249
        v_add_u32 v250, 30720, v248
        v_add_u32 v251, 30720, v249
        s_lshl_b32 s59, s3, 12
        s_add_u32 s59, s59, {XB}
        s_mov_b32 s50, 0
        s_and_b32 s11, s3, 1
        """)
        def xdma(u):
            return [(f"s_add_u32 m0, s59, {(u % RX) * 16384}" if i == 0 else None,
                     f"buffer_load_dwordx4 v{248+i}, s[36:39], s50 offen offset:{1024*i} lds", "E",
                     ["s_add_u32 s50, s50, 128"] if i == 3 else []) for i in range(4)]
        def dma_ops(u):
            b = LDS_A + (u % R) * US
            w = [(f"s_add_u32 m0, s48, {b + 4096 * (i // 4)}" if i % 4 == 0 else None,
                  f"buffer_load_dwordx4 v{252 + (i & 1) + 2 * (i // 4)}, s[28:31], s49 offen offset:{1024*(i&3)} lds", "D",
                  [f"s_add_u32 s49, s49, {64*6144}"] if i == 5 else []) for i in range(6)]
            return ("s_nop 0", w + (xdma(u + 1) if u < 15 else []), [])
        def xfrag(s):
            sp = o.get("xspread", 1)
            if (s % 2 == 0 and not sp) or s == 31: return []
            return [(q, f"ds_read_b128 a[{AX+(q%XS)*16+4*tb}:{AX+(q%XS)*16+4*tb+3}], v{3 + (q & 1)} offset:{((q // 2) % RX) * 16384 + 2048 * tb}")
                    for q in ((s + 1,) if sp else (s + 1, s + 2)) for tb in range(4)]
        def frag_ops(s, j, slot):
            sl = (s // 2) % R
            off = (sl & 1) * US + (s % 2) * 12288 + 2048 * (j >> 1); r = AW + 4 * slot; v = 8 + (j & 1) + 2 * (sl >> 1)
            return [f"ds_read_b64_tr_b16 a[{r}:{r+1}], v{v} offset:{off}", f"ds_read_b64_tr_b16 a[{r+2}:{r+3}], v{v} offset:{off+512}"]
        def mfma(s, j, tb, slot):
            d = ACC + (j * 4 + tb) * 4; xr = AX + (s % XS) * 16 + 4 * tb
            w = f"a[{AW+4*slot}:{AW+4*slot+3}]"; x = f"a[{xr}:{xr+3}]"
            if j >= 4: w, x = x, w
            return f"v_mfma_f32_16x16x32_bf16 v[{d}:{d+3}], {w}, {x}, {'0' if s == 0 else f'v[{d}:{d+3}]'}"
        def colsum(s):
            l = [f"s_cmp_eq_u32 s11, {s & 1}", f"s_cbranch_scc0 P1_c{s}"]
            for j in range(6):
                sl = (s * 6 + j) % WR; d = CS + 4 * j
                w = f"a[{AW+4*sl}:{AW+4*sl+3}]"; x = f"a[{ONE}:{ONE+3}]"
                if j >= 4: w, x = x, w
                l.append(f"v_mfma_f32_16x16x32_bf16 v[{d}:{d+3}], {w}, {x}, {'0' if s < 2 else f'v[{d}:{d+3}]'}")
            return l + [f"P1_c{s}:"]
        ex = {s: [] for s in range(32)}
        def put(lines, s_lo, s_hi):
            n = len(lines); span = (s_hi - s_lo) * 24
            for i, (tag, t) in enumerate(lines):
                if not t.startswith(("s_addc", "s_subb", "s_cselect", "s_cbranch")): p = i * span // n
                ex[s_lo + p // 24].append((min(p % 24, 22), tag, t))
        def at(s, pos, lines):
            for t in lines: ex[s].append((pos, "s", t))
        for w, s in ((1, 0), (2, 4), (3, 10)):
            at(s, 20, [f"s_cmp_eq_u32 s3, {w}", f"s_cbranch_scc0 P1_t{w}", "buffer_load_dword v15, v13, s[68:71], 0 offen", f"P1_t{w}:"])
        ex[3].append((3, "W:tag", ""))
        at(3, 3, ["v_readfirstlane_b32 s10, v17", "s_cmp_lg_u32 s10, 0", "s_cbranch_scc1 P1_tag", "s_mov_b32 s52, 0x40000", "v_mov_b32 v12, 0", "P1_tagpoll:",
                  "buffer_load_dword v17, v12, s[72:75], 0 offen sc1", "s_waitcnt vmcnt(0)", "v_readfirstlane_b32 s10, v17",
                  "s_sub_u32 s52, s52, 1", "s_cbranch_scc1 P1_tag", "s_cmp_eq_u32 s10, 0", "s_cbranch_scc1 P1_tagpoll", "P1_tag:"])
        at(4, 3, ["s_cmp_eq_u32 s3, 0", "s_cbranch_scc0 P1_a", "v_mov_b32 v12, s10", "s_lshl_b32 s52, s56, 2", "buffer_store_dword v12, v14, s[64:67], s52 offen sc1", "P1_a:"])
        at(16, 3, ["v_lshlrev_b32 v12, 4, v0"])
        ex[16].append((6, "V:poll", "buffer_load_dwordx4 v[16:19], v12, s[64:67], 0 offen sc1"))
        ex[20].append((3, "W:poll", ""))
        chk = ["v_xor_b32 v16, s10, v16", "v_xor_b32 v17, s10, v17", "v_xor_b32 v18, s10, v18", "v_xor_b32 v19, s10, v19",
               "v_or3_b32 v16, v16, v17, v18", "v_or_b32 v16, v16, v19", "v_cmp_ne_u32 vcc, 0, v16"]
        at(20, 3, chk + ["s_cbranch_vccz P1_ok", "s_mov_b32 s52, 0x40000", "P1_poll:",
                   "buffer_load_dwordx4 v[16:19], v12, s[64:67], 0 offen sc1", "s_waitcnt vmcnt(0)"] + chk +
                  ["s_sub_u32 s52, s52, 1", "s_cbranch_scc1 P1_ok", "s_cbranch_vccnz P1_poll", "P1_ok:"])
        ld = [("s", t) for t in self.capture(lambda: (
            a(f"s_lshl_b32 s52, s26, 1\ns_add_u32 s52, s52, s11\ns_lshl_b32 s52, s52, 8\ns_add_u32 s52, s52, {WS_XM}"),
            self.srd(32, 22, "s52", 8192 + 256),
            a("s_mov_b32 s53, 8192\nv_lshlrev_b32 v12, 2, v1\nv_lshlrev_b32 v13, 4, v2")))]
        for tb in range(4):
            ld += [("V:ld", f"buffer_load_dword v{224+2*tb}, v12, s[32:35], 0 offen offset:{64*tb} sc1"),
                   ("V:ld", f"buffer_load_dword v{232+2*tb}, v12, s[32:35], s53 offen offset:{64*tb} sc1"),
                   ("V:ld", f"buffer_load_dwordx4 v[{160+4*tb}:{163+4*tb}], v13, s[32:35], 0 offen offset:{64*tb} sc1"),
                   ("V:ld", f"buffer_load_dwordx4 v[{176+4*tb}:{179+4*tb}], v13, s[32:35], s53 offen offset:{64*tb} sc1")]
        put(ld, 21, 28)
        kv = self.capture(lambda: (a(f"""
            s_lshl_b32 s52, s56, 2
            s_add_u32 s52, s52, s3
            s_lshl_b32 s52, s52, 13
            s_add_u32 s52, s52, {WS_KV}
            v_lshlrev_b32 v12, 4, v0
            s_lshr_b32 s54, s3, 1
            s_mul_i32 s54, s54, 49152
            s_lshl_b32 s55, s11, 12
            s_add_u32 s54, s54, s55
            s_add_u32 s57, s54, {LDS_KV}
            v_add_u32 v13, s57, v12
            s_mul_i32 s54, s3, 6144
            v_add_u32 v5, s54, v12
            s_xor_b32 s54, s3, 1
            s_mul_i32 s54, s54, 6144
            v_add_u32 v6, s54, v12
            """), self.srd(40, 22, "s52", 0), a(f"s_mov_b32 s54, 4096")))
        put([("s", t) for t in kv], 29, 31)
        at(31, 3, ["s_cmp_lg_u32 s26, 15", f"s_cselect_b32 s42, 8192, 0"])
        for s in range(32 if not o.get('nocs') else 2): at(s, 23, colsum(s))
        if o.get("p1prof"):
            base = self.nt + 1
            for n, st in enumerate(o["p1prof"]):
                at(st, 0, [f"s_memtime s[{76+2*(base+n)}:{77+2*(base+n)}]"])
        td = o.get("l2d", 0)
        if td:
            for u in range(16):
                if u + 2 + td < 16: ex[2 * u].append((1, "V:t", "buffer_load_dword v26, v24, s[28:31], s49 offen"))
                if u + 3 + td < 16: ex[2 * u + 1].append((1, "V:t", "buffer_load_dword v26, v25, s[36:39], s50 offen"))
        lp = Loop(NTB, NFB, 32, 2, R, 2, 1, XS, LA, WR, 32, 2, None, dma_ops, frag_ops, mfma,
                  extra=lambda s, su: ex[s], pre=1, x0=0, cap=o.get("cap1", 8), cap0=10, clip=True, xfrag=xfrag)
        lp.e_frees = lambda u: (2 * (u + 1 - RX), 2 * (u + 1 - RX) + 1)
        lp.e_count = 4; lp.e_shared = True
        a("s_lshl_b32 s52, s3, 8\ns_add_u32 s52, s52, s2\ns_mul_i32 s52, s52, 6144")
        self.srd(68, 6, "s52", 6144)
        a("v_lshlrev_b32 v13, 7, v0\ns_cmp_eq_u32 s3, 0\ns_cbranch_scc0 P1_t0\nbuffer_load_dword v16, v13, s[68:71], 0 offen\nP1_t0:")
        self.emit(self.side_loads()); lp.note_vm(6, ("side", 0))
        if o.get("xtouch", 0):
            a("s_cmp_eq_u32 s3, 1\ns_cbranch_scc0 P1_tx\ns_lshl_b32 s52, s2, 14")
            self.srd(72, 4, "s52", 16384)
            a("v_lshrrev_b32 v16, 3, v0\nv_lshlrev_b32 v16, 11, v16\nv_and_b32 v17, 3, v0\nv_lshl_add_u32 v16, v17, 7, v16\nbuffer_load_dword v16, v16, s[72:75], 0 offen\nP1_tx:")
        for m0, t, _, _ in xdma(0):
            if m0: a(m0)
            a(t)
        lp.note_vm(4, ("E", -1))
        a("s_lshl_b32 s52, s27, 7\ns_sub_u32 s53, 0x600000, s52")
        self.srd(28, 6, "s52", "s53")
        a(f"""
        s_mul_i32 s53, s3, 98304
        s_mul_i32 s48, s3, 6144
        s_mov_b32 s49, 0
        s_mov_b32 s50, 128
        v_and_b32 v10, 2, v12
        v_xor_b32 v10, v10, v15
        v_mul_u32_u24 v252, 6144, v12
        v_lshl_add_u32 v252, v10, 4, v252
        v_add_u32 v252, s53, v252
        v_xor_b32 v253, 64, v252
        v_add_u32 v253, {8*6144 - 1024}, v253
        v_add_u32 v254, 4096, v252
        v_add_u32 v255, 4096, v253
        """)
        m0, l, post = dma_ops(0)
        for t in l[:6]:
            if t[0]: a(t[0])
            a(t[1])
        lp.note_vm(6, ("D", 0))
        self.emit(l[5][3])
        item = lambda t, u: ([t[0]] if t[0] else [], t[2], u, t[1], t[3])
        l1 = dma_ops(1)[1]
        for t in l[6:]:
            if t[0]: a(t[0])
            a(t[1]); self.emit(t[3])
        lp.note_vm(4, ("E", 0))
        lp.queue = [item(t, 1) for t in l1]
        lp.nd = 4
        if td:
            a(f"""
            s_and_b32 s52, s26, 3
            s_lshl_b32 s52, s52, 2
            s_lshl_b32 s53, s3, 4
            s_add_u32 s52, s52, s53
            s_mul_i32 s52, s52, 6144
            s_add_u32 s52, s52, {td * 64 * 6144}
            v_and_b32 v24, 3, v0
            v_mul_u32_u24 v24, 6144, v24
            v_lshrrev_b32 v25, 2, v0
            v_lshl_add_u32 v24, v25, 11, v24
            v_add_u32 v24, s52, v24
            v_mov_b32 v26, 0x7f000000
            v_cmp_gt_u32 vcc, 12, v0
            v_cndmask_b32 v24, v26, v24, vcc
            s_and_b32 s52, s27, 7
            s_lshl_b32 s52, s52, 13
            s_add_u32 s52, s52, {td * 128}
            v_lshlrev_b32 v25, 11, v0
            v_add_u32 v25, s52, v25
            v_cmp_gt_u32 vcc, 4, v0
            v_cndmask_b32 v25, v26, v25, vcc
            """)
        if o.get("code_touch", 1): self.code_touch("P1_code", "C_p3", 3, 20, 22)
        self.srd(72, 20, 0, 4)
        a(f"""
        v_lshrrev_b32 v12, 1, v2
        v_mul_u32_u24 v8, 6144, v12
        v_and_b32 v12, 1, v2
        v_lshl_add_u32 v8, v12, 10, v8
        v_lshrrev_b32 v11, 2, v1
        v_lshl_add_u32 v8, v11, 7, v8
        v_and_b32 v11, 3, v0
        v_lshl_add_u32 v8, v11, 3, v8
        v_lshrrev_b32 v11, 3, v1
        v_lshl_add_u32 v11, v12, 1, v11
        s_and_b32 s52, s3, 2
        v_xor_b32 v11, s52, v11
        v_lshl_add_u32 v8, v11, 5, v8
        v_xor_b32 v9, 32, v8
        v_add_u32 v10, {2*US}, v8
        v_add_u32 v11, {2*US}, v9
        v_lshrrev_b32 v12, 1, v1
        v_xor_b32 v12, v12, v2
        v_lshlrev_b32 v12, 4, v12
        v_lshl_add_u32 v12, v1, 7, v12
        s_lshl_b32 s52, s11, 13
        s_add_u32 s52, s52, {XB}
        v_add_u32 v3, s52, v12
        v_xor_b32 v12, 64, v12
        v_add_u32 v4, s52, v12
        v_mov_b32 v12, 0x3f803f80
        """)
        for r in range(4): a(f"v_accvgpr_write_b32 a{ONE+r}, v12")
        for tag, t in self.side_compute():
            if tag == "W:side": a(f"s_waitcnt vmcnt({lp._vwait({('side', 0)})})")
            else: a(t)
            if tag == "V:st": lp.note_vm(1, ("st", 0))
        a("v_mov_b32 v12, 0\nbuffer_load_dword v17, v12, s[72:75], 0 offen sc1"); lp.note_vm(1, ("tag", 0))
        self.emit(lp.start())
        self.stamp("p1go")
        a("P1_code:")
        self.emit(lp.loop("P1_loop"))
        for st in o.get("p1prof", []): self.names.append(f"s{st}"); self.nt += 1
        self.stamp("p1end")
        c = 32 ** -0.5 * LOG2E
        T = 192
        acc = lambda j, tb, r: ACC + (j * 4 + tb) * 4 + r
        def norm_qk(j, tb):
            for p in range(2):
                x = acc(j, tb, 2 * p); m = 224 + 2 * tb
                a(f"v_pk_fma_f32 v[{x}:{x+1}], v[{CS+4*j+2*p}:{CS+4*j+2*p+1}], v[{m}:{m+1}], v[{x}:{x+1}] op_sel_hi:[1,0,1] neg_lo:[0,1,0] neg_hi:[0,1,0]")
            for p in range(2):
                x = acc(j, tb, 2 * p); m = 232 + 2 * tb
                a(f"v_pk_mul_f32 v[{x}:{x+1}], v[{x}:{x+1}], v[{m}:{m+1}] op_sel_hi:[1,0]")
        for j in range(6): a(f"ds_write_b128 v5, v[{CS+4*j}:{CS+4*j+3}] offset:{1024*j}")
        a("s_waitcnt lgkmcnt(0)\ns_barrier")
        for j in range(6): a(f"ds_read_b128 v[{T+4*j}:{T+4*j+3}], v6 offset:{1024*j}")
        a("s_waitcnt vmcnt(0) lgkmcnt(0)")
        for j in (2, 3, 4, 5, 0, 1):
            for p in range(2): a(f"v_pk_add_f32 v[{CS+4*j+2*p}:{CS+4*j+2*p+1}], v[{CS+4*j+2*p}:{CS+4*j+2*p+1}], v[{T+4*j+2*p}:{T+4*j+2*p+1}]")
        for tb in range(4):
            t = T + 4 * tb
            for h in range(2): norm_qk(2 + h, tb)
            for h in range(2):
                for p in range(2): a(f"v_cvt_pk_bf16_f32 v{t+2*h+p}, v{acc(2+h,tb,2*p)}, v{acc(2+h,tb,2*p+1)}")
            a(f"buffer_store_dwordx4 v[{t}:{t+3}], v12, s[40:43], 0 offen offset:{1024*tb} sc1")
        for pr in range(2):
            for db in range(2):
                t = T + 16 + 4 * (2 * pr + db); j = 4 + db
                for h in range(2):
                    tb = 2 * pr + h
                    for p in range(2):
                        x = acc(j, tb, 2 * p); m = 160 + 4 * tb + 2 * p
                        a(f"v_pk_fma_f32 v[{x}:{x+1}], v[{m}:{m+1}], v[{CS+4*j}:{CS+4*j+1}], v[{x}:{x+1}] neg_lo:[0,1,0] neg_hi:[0,1,0]")
                    for p in range(2):
                        x = acc(j, tb, 2 * p); m = 176 + 4 * tb + 2 * p
                        a(f"v_pk_mul_f32 v[{x}:{x+1}], v[{x}:{x+1}], v[{m}:{m+1}]")
                for h in range(2):
                    for p in range(2): a(f"v_cvt_pk_bf16_f32 v{t+2*h+p}, v{acc(j,2*pr+h,2*p)}, v{acc(j,2*pr+h,2*p+1)}")
                a(f"buffer_store_dwordx4 v[{t}:{t+3}], v12, s[40:43], s54 offen offset:{2048*pr+1024*db} sc1")
        for i in range(4): a(f"ds_write_b128 v13, v[{T+4*i}:{T+4*i+3}] offset:{16384+1024*i}")
        for i in range(4): a(f"ds_write_b128 v13, v[{T+16+4*i}:{T+16+4*i+3}] offset:{24576+16384+1024*i}")
        for tb in range(4): a(f"v_mul_f32 v{232+2*tb}, {f2h(c)}, v{232+2*tb}")
        def qpart():
            for tb in range(4):
                for h in range(2): norm_qk(h, tb)
                for h in range(2):
                    for p in range(2): a(f"v_cvt_pk_bf16_f32 v{16+4*tb+2*h+p}, v{acc(h,tb,2*p)}, v{acc(h,tb,2*p+1)}")
        return qpart

    NB = "0xf149f2ca"
    def p2_setup(self):
        a = self.a
        a(f"""
        s_lshl_b32 s52, s26, 1
        s_add_u32 s52, s52, s11
        s_lshl_b32 s52, s52, 17
        s_lshl_b32 s53, s27, 1
        s_lshr_b32 s54, s3, 1
        s_add_u32 s53, s53, s54
        s_lshl_b32 s53, s53, 11
        s_add_u32 s52, s52, s53
        s_add_u32 s52, s52, {WS_OT}
        """)
        self.srd(40, 22, "s52", 65536 + 2048)
        self.srd(36, 22, WS_KV, 8 * MB)
        a(f"""
        v_lshlrev_b32 v4, 4, v0
        s_lshl_b32 s52, s26, 4
        s_add_u32 s52, s52, s27
        s_lshl_b32 s52, s52, 2
        s_add_u32 s52, s52, s3
        s_lshl_b32 s52, s52, 13
        s_sub_u32 s53, s52, {2*16*32768}
        s_cselect_b32 s53, 0x7f000000, s53
        v_add_u32 v3, s53, v4
        s_sub_u32 s53, s52, {16*32768}
        s_cselect_b32 s53, 0x7f000000, s53
        v_add_u32 v247, s53, v4
        v_add_u32 v5, s57, v4
        v_mov_b32 v6, {self.NB}
        v_lshlrev_b32 v7, 2, v2
        s_mov_b32 s56, 4096
        """)
        for r in range(4):
            a(f"v_add_u32 v12, {r}, v7\nv_cmp_gt_u32 vcc, v12, v1\nv_cndmask_b32 v{32+r}, 0, v6, vcc\nv_cndmask_b32_e64 v{8+r}, v6, 0, vcc")
        for r in range(4): a(f"v_mov_b32 v12, 0x3f803f80\nv_accvgpr_write_b32 a{144+r}, v12")
        for r in (234, 235, 236, 237): a(f"v_mov_b32 v{r}, 0")
    def p2_halo(self, which):
        a = self.a
        for lb, so in ((0, "0"), (24576, "s56")):
            a(f"s_add_u32 m0, s57, {lb + 8192 * which}")
            for i in range(4): a(f"buffer_load_dwordx4 v{(3, 247)[which]}, s[36:39], {so} offen offset:{1024*i} sc1 lds")
    def p2_main(self, bg):
        a = self.a; NB = self.NB
        DM, ER, EP, CQ = 32, 8, 36, 40
        O, S, PZA, PZB = 72, 96, 232, 236
        Sreg = lambda qb, p: S + 68 * qb + 4 * (p - qb)
        a("s_lshl_b32 s63, s26, 1\ns_add_u32 s63, s63, s11\ns_lshl_b32 s63, s63, 1\ns_mov_b32 s55, 0\ns_mov_b32 s51, 2")
        for r in range(32): a(f"v_mov_b32 v{CQ+r}, 0")
        for r in range(4): a(f"v_mov_b32 v{EP+r}, v{ER+r}")
        def body():
            kq = [f"ds_read_b128 a[{4*p}:{4*p+3}], v5 offset:{1024*p}" for p in range(18)]
            vq = [f"ds_read_b128 a[{72+4*i}:{75+4*i}], v5 offset:{24576 + 1024*i}" for i in range(18)]
            self.emit(kq[:8])
            a("s_cmp_ge_u32 s26, 2\ns_cbranch_scc1 P2_nobias")
            for p in range(8):
                a(f"s_cmp_lt_u32 s63, {8-p}\ns_cselect_b32 s53, {NB}, 0")
                for r in range(4): a(f"v_mov_b32 v{CQ+4*p+r}, s53")
            for r in range(4): a(f"v_add_f32 v{EP+r}, v{ER+r}, v{CQ}")
            a("P2_nobias:")
            issued = 8
            q = [f"v[{16+4*qb}:{19+4*qb}]" for qb in range(2)]
            rest = kq[8:] + vq
            M = [12, 14]
            def max_ops(qb, p):
                s = Sreg(qb, p)
                if p == qb: return [f"v_max3_f32 v{M[qb]}, v{s}, v{s+1}, v{s+2}", f"v_max_f32 v{M[qb]}, v{M[qb]}, v{s+3}"]
                return [f"v_max3_f32 v{M[qb]}, v{M[qb]}, v{s}, v{s+1}", f"v_max3_f32 v{M[qb]}, v{M[qb]}, v{s+2}, v{s+3}"]
            todo = []
            for p in range(18):
                if p % 2 == 0: a(f"s_waitcnt lgkmcnt({min(15, issued - p - 2)})")
                for qb in range(2):
                    if (qb == 0 and p == 17) or (qb == 1 and p == 0): continue
                    if p == qb: c = f"v[{EP}:{EP+3}]"
                    elif p == 16 + qb: c = f"v[{DM}:{DM+3}]"
                    elif p >= 16: c = "0"
                    else: c = f"v[{CQ+4*(p//2)}:{CQ+4*(p//2)+3}]"
                    s = Sreg(qb, p)
                    a(f"v_mfma_f32_16x16x32_bf16 v[{s}:{s+3}], a[{4*p}:{4*p+3}], {q[qb]}, {c}")
                    todo.append((qb, p))
                    if rest and issued - p - 1 < 12:
                        a(rest.pop(0)); issued += 1
                    if len(todo) > 4: self.emit(max_ops(*todo.pop(0)))
            for r in range(8): a(f"v_mov_b32 v{16+r}, v{24+r}")
            for t in todo: self.emit(max_ops(*t))
            if rest: a("s_waitcnt lgkmcnt(6)")
            assert len(rest) <= 8
            self.emit(rest)
            for h in ("16", "32"):
                a(f"v_mov_b32 v13, v12\nv_mov_b32 v15, v14\ns_nop 0\nv_permlane{h}_swap_b32 v13, v12\nv_permlane{h}_swap_b32 v15, v14\nv_max_f32 v12, v13, v12\nv_max_f32 v14, v15, v14")
            Oreg = lambda qb, k: O + 12 * qb + 4 * k
            self.mark = len(a.lines)
            units = [(P, qb) for P in range(9) for qb in range(2)]
            def regs_of_unit(P, qb):
                return [Sreg(qb, p) + r for p in (2 * P, 2 * P + 1) if qb <= p <= 16 + qb for r in range(4)]
            def sub_ops(P, qb):
                return [f"v_pk_add_f32 v[{r}:{r+1}], v[{r}:{r+1}], v[{M[qb]}:{M[qb]+1}] op_sel_hi:[1,0] neg_lo:[0,1] neg_hi:[0,1]" for r in regs_of_unit(P, qb)[::2]]
            def pv_ops(P, qb):
                n = len(regs_of_unit(P, qb))
                pq = regs_of_unit(P, qb)[0] if n == 8 else (PZA if qb == 0 else PZB)
                out = []
                for k in range(3):
                    A = f"a[{72+4*(2*P+k)}:{75+4*(2*P+k)}]" if k < 2 else "a[144:147]"
                    o = Oreg(qb, k)
                    out.append(f"v_mfma_f32_16x16x32_bf16 v[{o}:{o+3}], {A}, v[{pq}:{pq+3}], {'0' if P == 0 else f'v[{o}:{o+3}]'}")
                return out
            self.emit(sub_ops(*units[0]))
            pend = []
            for n, (P, qb) in enumerate(units):
                regs = regs_of_unit(P, qb)
                ex = [f"v_exp_f32 v{r}, v{r}" for r in regs]
                for i, e in enumerate(ex):
                    a(e)
                    if pend and i % 2 == 1: a(pend.pop(0))
                self.emit(pend)
                if n + 1 < len(units): self.emit(sub_ops(*units[n + 1]))
                dst = regs[0] if len(regs) == 8 else (PZA if qb == 0 else PZB + 2)
                for i in range(len(regs) // 2): a(f"v_cvt_pk_bf16_f32 v{dst+i}, v{regs[2*i]}, v{regs[2*i+1]}")
                if n == 0: a("s_waitcnt lgkmcnt(0)")
                pend = pv_ops(P, qb)
            self.mark2 = len(a.lines)
            self.emit(pend)
            a("v_add_u32 v5, 2048, v5\ns_add_u32 s63, s63, 1")
            for qb in range(2): a(f"v_rcp_f32 v{M[qb]}, v{Oreg(qb,2)}")
            for db in range(2):
                t = S + 4 * db
                for qb in range(2):
                    o = Oreg(qb, db)
                    for p in range(2): a(f"v_pk_mul_f32 v[{o+2*p}:{o+2*p+1}], v[{o+2*p}:{o+2*p+1}], v[{M[qb]}:{M[qb]+1}] op_sel_hi:[1,0]")
                    for p in range(2): a(f"v_cvt_pk_bf16_f32 v{t+2*qb+p}, v{o+2*p}, v{o+2*p+1}")
                a(f"v_permlane16_swap_b32 v{t}, v{t+2}\nv_permlane16_swap_b32 v{t+1}, v{t+3}")
                a(f"buffer_store_dwordx4 v[{t}:{t+3}], v4, s[40:43], s55 offen offset:{1024*db} sc1")
        b = self.capture(body)
        b = sprinkle(b, bg, self.mark, self.mark2)
        b += ["s_mov_b32 s55, 65536"] + self.p2_tail + ["s_sub_u32 s51, s51, 1", "s_cmp_lg_u32 s51, 0"]
        b = pad_hazards(b)
        check_trace(b + ["s_cbranch_scc1 P2_loop"] + b)
        a("P2_loop:"); self.emit(b); a("s_cbranch_scc1 P2_loop")

    def w64_scalar(self, ptr, rows, period=0):
        a = self.a
        a(f"s_lshl_b32 s52, s27, 7\ns_sub_u32 s53, {rows*2048}, s52")
        self.srd(28, ptr, "s52", "s53")
        a(f"s_lshl_b32 s48, s3, 10")
        self.rot_init("s49", "s60", 65536, period)
    def w64_dmaoff(self, vd, t):
        self.a(f"""
        v_lshrrev_b32 v{t}, 3, v0
        v_and_b32 v{t+1}, 7, v0
        v_and_b32 v{t+2}, 2, v{t}
        s_and_b32 s52, s3, 1
        s_lshl_b32 s52, s52, 2
        v_or_b32 v{t+2}, s52, v{t+2}
        v_xor_b32 v{t+1}, v{t+1}, v{t+2}
        s_lshl_b32 s52, s3, 14
        v_lshlrev_b32 v{vd}, 11, v{t}
        v_lshl_add_u32 v{vd}, v{t+1}, 4, v{vd}
        v_add_u32 v{vd}, s52, v{vd}
        """)
    def w64_trbase(self):
        a = self.a
        a("""
        v_lshrrev_b32 v10, 2, v1
        v_lshl_add_u32 v10, v2, 3, v10
        v_lshlrev_b32 v10, 7, v10
        v_and_b32 v11, 3, v0
        v_lshl_add_u32 v10, v11, 3, v10
        v_lshrrev_b32 v11, 3, v1
        v_and_b32 v12, 1, v2
        v_lshl_add_u32 v11, v12, 1, v11
        """)
        for j in range(4): a(f"v_xor_b32 v12, {j}, v11\nv_lshl_add_u32 v{5+j}, v12, 5, v10")
    def w64_dma(self, R, period=0):
        def dma_ops(u):
            return (f"s_add_u32 m0, s48, {LDS_A + (u % R) * 4096}",
                    [f"buffer_load_dwordx4 v{self.vdma}, s[28:31], s49 offen lds"], self.rot_next(u, "s49", "s60", 65536, period))
        return dma_ops
    def rstd_loads(self, tok_expr, ntb, dst, voff):
        a = self.a
        a(tok_expr)
        a(f"s_lshl_b32 s52, s52, 2\ns_sub_u32 s53, 131072, s52\ns_add_u32 s52, s52, {WS_SSQ}")
        self.srd(44, 22, "s52", "s53")
        a(f"v_lshlrev_b32 v{voff}, 15, v2\nv_lshl_add_u32 v{voff}, v1, 2, v{voff}\ns_mov_b32 s53, 8192\ns_mov_b32 s54, 16384\ns_mov_b32 s55, 24576")
        ops = []
        for tb in range(ntb):
            for i, so in enumerate(["0", "s53", "s54", "s55"]):
                ops.append(f"buffer_load_dword v{dst+4*tb+i}, v{voff}, s[44:47], {so} offen offset:{64*tb} sc1")
        return ops
    def rstd_finish(self, ntb, src, dst, tmp, scale=None):
        a = self.a
        for tb in range(ntb):
            s = src + 4 * tb
            a(f"v_add_f32 v{s}, v{s}, v{s+1}\nv_add_f32 v{s+2}, v{s+2}, v{s+3}\nv_add_f32 v{s}, v{s}, v{s+2}")
            self.red16_32(s, tmp, "v_add_f32")
            d = dst + 2 * tb
            a(f"v_mov_b32 v{d}, {f2h(1e-5)}\nv_fmac_f32 v{d}, {f2h(1/1024)}, v{s}\nv_rsq_f32 v{d}, v{d}")
            if scale is not None: a(f"v_mul_f32 v{d}, {f2h(scale)}, v{d}")

    def p3_early(self):
        a = self.a
        NTB, NFB, R, XS, WR = 2, 5, 16, 8, 8
        ACC = 32; AX = 0; AW = XS * 8; LB = LDS_WB
        def frag_ops(s, j, slot):
            r = AW + 4 * slot
            if j == 4: return [f"ds_read_b128 a[{r}:{r+3}], v9 offset:{s * 64}"]
            off = LDS_A + (s % R) * 4096
            return [f"ds_read_b64_tr_b16 a[{r}:{r+1}], v{5+j} offset:{off}", f"ds_read_b64_tr_b16 a[{r+2}:{r+3}], v{5+j} offset:{off+512}"]
        def mfma(s, j, tb, slot):
            d = ACC + (j * NTB + tb) * 4; xr = AX + (s % XS) * 8 + 4 * tb
            return f"v_mfma_f32_16x16x32_bf16 v[{d}:{d+3}], a[{AW+4*slot}:{AW+4*slot+3}], a[{xr}:{xr+3}], v[{d}:{d+3}]"
        t3 = self.opt.get("touch_p3", "")
        def extra3(s, su):
            k, w = divmod(s - 2, 4)
            if s < 2 or k >= len(t3): return []
            return [(3, "s", f"s_cmp_eq_u32 s3, {w}"), (3, "s", f"s_cbranch_scc0 P3_t{s}"),
                    (3, "s", f"buffer_load_dword v31, v30, s[{(68, 72)[k]}:{(71, 75)[k]}], 0 offen"), (3, "s", f"P3_t{s}:")]
        self.lp3 = lp = Loop(NTB, NFB, 32, 1, R, 10, 6, XS, 6, WR, 32, 4, self.x_ops_fn(NTB, AX, XS, 0, " sc1"), self.w64_dma(R), frag_ops, mfma, pre=10, clip=True, extra=extra3)
        self.w64_scalar(8, 1024)
        self.vdma = 4
        self.w64_dmaoff(242, 243)
        a("""
        s_lshl_b32 s56, s26, 2
        s_add_u32 s56, s56, s3
        s_lshl_b32 s52, s56, 16
        s_lshl_b32 s53, s27, 7
        s_add_u32 s52, s52, s53
        s_sub_u32 s53, 65536, s53
        """)
        self.srd(44, 4, "s52", "s53")
        a(f"""
        v_lshrrev_b32 v245, 3, v0
        v_lshrrev_b32 v246, 4, v0
        v_and_b32 v244, 7, v0
        v_xor_b32 v244, v244, v246
        v_lshlrev_b32 v243, 11, v245
        v_lshl_add_u32 v243, v244, 4, v243
        v_xor_b32 v244, 64, v243
        v_add_u32 v244, 15360, v244
        s_lshl_b32 s61, s3, 12
        s_add_u32 s61, s61, {LDS_X}
        s_mov_b32 s59, 0
        s_add_u32 s62, s48, {LDS_A}
        """)
        bg = []
        for u in range(5):
            bg.append(["s_mov_b32 m0, s62", "s_add_u32 s62, s62, 4096", "buffer_load_dwordx4 v242, s[28:31], s49 offen lds", "s_add_u32 s49, s49, 65536"])
        bg.insert(2, ["s_mov_b32 m0, s61", "s_add_u32 s61, s61, 2048", "buffer_load_dwordx4 v243, s[44:47], s59 offen lds"])
        bg.insert(5, ["s_sub_u32 m0, s61, 2048", "s_nop 0", "buffer_load_dwordx4 v244, s[44:47], s59 offen offset:1024 lds", "s_add_u32 s59, s59, 32768"])
        return bg
    def p3_small(self):
        a = self.a; LB = LDS_WB
        self.srd(32, 22, WS_WB, 4096)
        a(f"""
        s_lshl_b32 s52, s3, 10
        v_add_u32 v12, s52, v4
        s_lshr_b32 s54, s3, 1
        s_lshl_b32 s54, s54, 7
        s_add_u32 s52, s52, s54
        s_add_u32 m0, s52, {LB}
        v_lshlrev_b32 v13, 2, v1
        buffer_load_dwordx4 v12, s[32:35], 0 offen sc1 lds
        s_lshl_b32 s52, s26, 2
        s_add_u32 s52, s52, s3
        s_lshl_b32 s52, s52, 7
        s_add_u32 s52, s52, {WS_XM}
        """)
        self.srd(32, 22, "s52", 128)
        a("buffer_load_dword a164, v13, s[32:35], 0 offen sc1\nbuffer_load_dword a165, v13, s[32:35], 0 offen offset:64 sc1")
        return 3
    def p3_setup(self):
        a = self.a; ACC = 32; LB = LDS_WB
        self.w64_dmaoff(4, 10)
        self.w64_trbase()
        self.x_setup(WS_OT, "s_lshl_b32 s56, s26, 2\ns_add_u32 s56, s56, s3\ns_mov_b32 s52, s56", 1, 65536)
        a(f"""
        v_and_b32 v9, 1, v0
        v_mul_u32_u24 v9, 2176, v9
        v_lshl_add_u32 v9, v2, 4, v9
        v_add_u32 v9, {LB}, v9
        v_lshlrev_b32 v14, 4, v0
        """)
        a(f"s_lshl_b32 s52, s56, 16\ns_lshl_b32 s53, s27, 12\ns_add_u32 s52, s52, s53\ns_add_u32 s52, s52, {WS_HC}")
        self.srd(40, 22, "s52", 4096)
        a(f"s_lshl_b32 s52, s56, 7\ns_lshl_b32 s53, s27, 13\ns_add_u32 s53, s52, s53\ns_add_u32 s53, s53, {WS_SSQ}")
        self.srd(44, 22, "s53", 128)
        a(f"""
        v_lshrrev_b32 v10, 1, v1
        v_lshrrev_b32 v11, 1, v2
        v_xor_b32 v10, v10, v11
        v_lshlrev_b32 v10, 4, v10
        v_lshl_add_u32 v10, v1, 7, v10
        v_and_b32 v11, 1, v2
        v_lshl_add_u32 v10, v11, 3, v10
        s_lshl_b32 s52, s3, 12
        s_add_u32 s52, s52, {LDS_X}
        """)
        for j in range(4):
            a(f"v_xor_b32 v11, {32*j}, v10\nv_add_u32 v11, s52, v11")
            for tb in range(2): a(f"ds_read_b64 v[{72+4*j+2*tb}:{73+4*j+2*tb}], v11 offset:{2048*tb}")
        a("s_waitcnt lgkmcnt(0)")
        for i in range(16): a(f"v_lshlrev_b32 v{ACC+2*i}, 16, v{72+i}\nv_and_b32 v{ACC+2*i+1}, 0xffff0000, v{72+i}")
        t3 = self.opt.get("touch_p3", "")
        if t3:
            a("s_lshl_b32 s52, s2, 2\ns_add_u32 s52, s52, s3\ns_mul_i32 s53, s52, 7168\ns_mul_i32 s52, s52, 3584\ns_add_u32 s52, s52, 3670016\nv_lshlrev_b32 v30, 7, v0")
            for k, c in enumerate(t3):
                p, off, sz = {"g": (12, "s52", 3584), "u": (14, "s52", 3584), "d": (16, "s53", 7168)}[c]
                self.srd((68, 72)[k], p, off, sz)
        a("v_accvgpr_read_b32 v22, a164\nv_accvgpr_read_b32 v24, a165")
        for r in range(8): a(f"v_mov_b32 v{ACC+32+r}, 0")
    def p3_main(self):
        a = self.a; lp = self.lp3; ACC = 32; NTB = 2
        self.emit(lp.prologue_x())
        self.emit(lp.start())
        self.stamp("p3go")
        self.emit(lp.loop("P3_loop"))
        self.stamp("_p3end")
        acc = lambda j, tb, r: ACC + (j * NTB + tb) * 4 + r
        for tb in range(2):
            a(f"v_add_f32 v{22+2*tb}, v{22+2*tb}, v{acc(4,tb,0)}\nv_add_f32 v{22+2*tb}, v{22+2*tb}, v{acc(4,tb,1)}")
        for j in range(4):
            t = 72 + 4 * j
            for tb in range(2):
                for p in range(2):
                    x = acc(j, tb, 2 * p)
                    a(f"v_pk_add_f32 v[{96+x-ACC}:{97+x-ACC}], v[{x}:{x+1}], v[{22+2*tb}:{23+2*tb}] op_sel_hi:[1,0] neg_lo:[0,1] neg_hi:[0,1]")
                for p in range(2): a(f"v_cvt_pk_bf16_f32 v{t+2*tb+p}, v{64+acc(j,tb,2*p)}, v{64+acc(j,tb,2*p+1)}")
            a(f"v_permlane16_swap_b32 v{t}, v{t+2}\nv_permlane16_swap_b32 v{t+1}, v{t+3}")
            a(f"buffer_store_dwordx4 v[{t}:{t+3}], v14, s[40:43], 0 offen offset:{1024*j} sc1")
        for tb in range(2):
            for j in range(4):
                for r in range(4):
                    x = 64 + acc(j, tb, r)
                    a(f"v_mul_f32 v{26+tb}, v{x}, v{x}" if j == 0 and r == 0 else f"v_fmac_f32 v{26+tb}, v{x}, v{x}")
            self.red16_32(26 + tb, 28, "v_add_f32")
        a("""
        v_and_b32 v28, 1, v2
        v_cmp_eq_u32 vcc, 1, v28
        v_cndmask_b32 v26, v26, v27, vcc
        v_lshlrev_b32 v28, 2, v0
        buffer_store_dword v26, v28, s[44:47], 0 offen sc1
        """)
        for r in range(32): a(f"v_accvgpr_write_b32 a{128+r}, v{ACC+r}")

    def p4_setup(self, R=4, L=2, XD=2, U=4, BP=1, per=0):
        a = self.a
        NTB, NFB, XS, WR = 4, 14, 4, 4
        SS = 16896; ACC = 32; AX = 0; AW = 64
        nbase = (R + 2) // 3
        RB = LDS_B if R == 4 else 28672
        phys = (lambda u: u % R) if R == 4 else (lambda u: (u + 3) % R)
        a(f"s_mul_i32 s52, s25, 224\ns_sub_u32 s53, {1024*7168}, s52")
        self.srd(28, 12, "s52", "s53")
        a(f"""
        s_add_u32 s32, s14, s52
        s_addc_u32 s33, s15, 0
        s_sub_u32 s32, s32, 2048
        s_subb_u32 s33, s33, 0
        s_add_u32 s34, s53, 2048
        s_mov_b32 s35, {SRD3}
        s_mul_i32 s52, s3, 57344
        """)
        for i in range(2):
            a(f"""
            v_add_u32 v10, {64*i}, v0
            v_mul_u32_u24 v11, 4682, v10
            v_lshrrev_b32 v11, 16, v11
            v_mul_u32_u24 v12, 14, v11
            v_sub_u32 v12, v10, v12
            v_mul_u32_u24 v{5+i}, 7168, v11
            v_lshl_add_u32 v{5+i}, v12, 4, v{5+i}
            v_add_u32 v{5+i}, s52, v{5+i}
            """)
        a(f"""
        v_subrev_u32 v6, 1024, v6
        v_mov_b32 v10, 0x7f000000
        v_cmp_gt_u32 vcc, 48, v0
        v_cndmask_b32 v6, v10, v6, vcc
        s_mul_i32 s48, s3, 4224
        s_add_u32 s48, s48, {RB}
        """)
        self.rot_init("s49", "s56", 32*7168, per, base="s11")
        def dma_ops(u):
            return (f"s_add_u32 m0, s48, {phys(u) * SS}",
                    ["buffer_load_dwordx4 v5, s[28:31], s49 offen lds",
                     "buffer_load_dwordx4 v6, s[28:31], s49 offen offset:1024 lds",
                     "buffer_load_dwordx4 v5, s[32:35], s49 offen offset:2048 lds",
                     "buffer_load_dwordx4 v6, s[32:35], s49 offen offset:3072 lds"],
                    self.rot_next(u, "s49", "s56", 32*7168, per, base="s11"))
        def frag_ops(s, j, slot):
            sl = phys(s); mt, jj = divmod(j, 7); r = AW + 4 * slot
            off = (sl % 3) * SS + mt * 2048 + jj * 32
            return [f"ds_read_b64_tr_b16 a[{r}:{r+1}], v{7 + sl//3} offset:{off}", f"ds_read_b64_tr_b16 a[{r+2}:{r+3}], v{7 + sl//3} offset:{off+896}"]
        def mfma(s, j, tb, slot):
            d = ACC + (j * NTB + tb) * 4; xr = AX + (s % XS) * 16 + 4 * tb
            return f"v_mfma_f32_16x16x32_bf16 v[{d}:{d+3}], a[{AW+4*slot}:{AW+4*slot+3}], a[{xr}:{xr+3}], v[{d}:{d+3}]"
        extra = None
        tp = self.opt.get("touch_p4", "gud")
        if tp:
            def extra(s, su):
                if su != 1: return []
                return [(9, "s", "s_add_u32 s63, s63, 1"), (10, "s", f"s_and_b32 s57, s63, {self.opt.get('tmask', 1)}"), (11, "s", "s_cmp_eq_u32 s57, s21"), (11, "s", f"s_cbranch_scc0 P4_t"),
                        (11, "s", "buffer_load_dword v31, v13, s[68:71], 0 offen"),
                        (11, "s", "s_mov_b32 s68, s72"), (11, "s", "s_mov_b32 s69, s73"), (11, "s", "s_mov_b32 s70, s74"),
                        (11, "s", "s_mov_b32 s72, s60"), (11, "s", "s_mov_b32 s73, s61"), (11, "s", "s_mov_b32 s74, s62"), (11, "s", "s_mov_b32 s62, 0"),
                        (11, "s", f"P4_t:")]
        self.lp4 = lp = Loop(NTB, NFB, 32, 1, R, L, XD, XS, 3, WR, U, BP, self.x_ops_fn(NTB, AX, XS, per, " sc1", base="s75"), dma_ops, frag_ops, mfma, extra=extra)
        if extra:
            a("s_lshl_b32 s52, s2, 2\ns_add_u32 s52, s52, s3\ns_mul_i32 s53, s52, 7168\ns_mul_i32 s52, s52, 3584\ns_add_u32 s52, s52, 3670016\nv_lshlrev_b32 v13, 7, v0\ns_mov_b32 s63, -1")
            a(f"s_and_b32 s21, s3, {self.opt.get('tmask', 1)}")
            q = {"g": (12, "s52", 3584), "u": (14, "s52", 3584), "d": (16, "s53", 7168)}
            regs = (68, 72, 60)
            for k in range(3):
                d = regs[k]
                if k < len(tp):
                    p, off, sz = q[tp[k]]
                    a(f"s_add_u32 s{d}, s{p}, {off}\ns_addc_u32 s{d+1}, s{p+1}, 0\ns_mov_b32 s{d+2}, {sz}")
                else: a(f"s_mov_b32 s{d}, s16\ns_mov_b32 s{d+1}, s17\ns_mov_b32 s{d+2}, 0")
            a(f"s_mov_b32 s71, {SRD3}")
        self.x_setup(WS_HC, "s_lshl_b32 s52, s24, 2\ns_add_u32 s52, s52, s3\ns_lshl_b32 s52, s52, 1", 2, 65536, per, base="s75")
        a(f"""
        v_mul_u32_u24 v7, 4224, v2
        v_lshrrev_b32 v10, 2, v1
        v_mul_u32_u24 v10, 224, v10
        v_add_u32 v7, v7, v10
        v_and_b32 v10, 3, v0
        v_lshl_add_u32 v7, v10, 3, v7
        v_add_u32 v7, {RB}, v7
        """)
        for b in range(1, nbase): a(f"v_add_u32 v{7+b}, {3*SS*b}, v7")
        for r in range(224): a(f"v_mov_b32 v{ACC+r}, 0")
        a(f"""
        s_lshl_b32 s52, s24, 2
        s_add_u32 s52, s52, s3
        s_mul_i32 s52, s52, {2*229376}
        s_mul_i32 s53, s25, 7168
        s_add_u32 s52, s52, s53
        s_add_u32 s52, s52, {WS_HH}
        """)
        self.srd(40, 22, "s52", 229376 + 7168)
        self.r4 = self.rstd_loads("s_lshl_b32 s52, s24, 2\ns_add_u32 s52, s52, s3\ns_lshl_b32 s52, s52, 6", 4, 14, 30)
    def p4_main(self):
        a = self.a; lp = self.lp4
        self.emit(lp.prologue_x())
        self.emit(self.r4); lp.note_vm(len(self.r4), ("init", 0))
        self.emit(lp.start())
        self.stamp("p4go")
        self.emit(lp.loop("P4_loop"))
        self.stamp("p4end")
    def p4_epilogue(self, bg):
        a = self.a; ACC = 32; NTB = 4
        self.rstd_finish(4, 14, 6, 30, scale=-LOG2E)
        a(f"v_lshlrev_b32 v14, 4, v0\ns_mov_b32 s53, 4096\ns_mov_b32 s54, 229376\ns_mov_b32 s55, {229376+4096}")
        acc = lambda j, tb, r: ACC + (j * NTB + tb) * 4 + r
        def body():
            n = 0
            for pr in range(2):
                for jj in range(7):
                    t = 16 + 4 * (n % 4); n += 1
                    el = [(acc(jj, tb, r), acc(7 + jj, tb, r), 6 + 2 * tb) for tb in (2 * pr, 2 * pr + 1) for r in range(4)]
                    for g, u, h in el[::2]: a(f"v_pk_mul_f32 v[{g}:{g+1}], v[{g}:{g+1}], v[{h}:{h+1}] op_sel_hi:[1,0]")
                    for g, u, h in el: a(f"v_exp_f32 v{g}, v{g}")
                    for g, u, h in el[::2]: a(f"v_pk_add_f32 v[{g}:{g+1}], v[{g}:{g+1}], 1.0 op_sel_hi:[1,0]")
                    for g, u, h in el: a(f"v_rcp_f32 v{g}, v{g}")
                    for g, u, h in el[::2]: a(f"v_pk_mul_f32 v[{u}:{u+1}], v[{u}:{u+1}], v[{g}:{g+1}]")
                    for i in range(4): a(f"v_cvt_pk_bf16_f32 v{t+i}, v{el[2*i][1]}, v{el[2*i+1][1]}")
                    a(f"v_permlane16_swap_b32 v{t}, v{t+2}\nv_permlane16_swap_b32 v{t+1}, v{t+3}")
                    so = ["0", "s53", "s54", "s55"][2 * pr + jj // 4]
                    a(f"buffer_store_dwordx4 v[{t}:{t+3}], v14, s[40:43], {so} offen offset:{1024*(jj%4)} sc1")
        b = self.capture(body)
        self.emit(sprinkle(b, bg, 0, len(b) * 3 // 4))

    def p5_early(self):
        a = self.a; o = self.opt.get("p5", {})
        NTB, NFB, R, WR = 2, 8, o.get('R', 14), 8
        XS = R
        ACC = 32; AX = 0; AW = XS * 8
        per = self.per5 = o.get("per", 0)
        def dma_ops(u):
            return (f"s_add_u32 m0, s48, {LDS_A + (u % R) * 8192}",
                    ["buffer_load_dwordx4 v4, s[28:31], s49 offen lds", "buffer_load_dwordx4 v5, s[28:31], s49 offen offset:1024 lds"],
                    self.rot_next(u, "s49", "s60", 65536, per))
        def frag_ops(s, j, slot):
            r = AW + 4 * slot; sl = s % R
            v, off = (6 + j, sl * 8192) if sl < 8 else (160 + j, (sl - 8) * 8192)
            return [f"ds_read_b64_tr_b16 a[{r}:{r+1}], v{v} offset:{off}", f"ds_read_b64_tr_b16 a[{r+2}:{r+3}], v{v} offset:{off+1024}"]
        def mfma(s, j, tb, slot):
            d = ACC + (j * NTB + tb) * 4; xr = AX + (s % XS) * 8 + 4 * tb
            return f"v_mfma_f32_16x16x32_bf16 v[{d}:{d+3}], a[{AW+4*slot}:{AW+4*slot+3}], a[{xr}:{xr+3}], v[{d}:{d+3}]"
        self.lp5 = lp = Loop(NTB, NFB, 56, 1, R, o.get("L", 8), o.get("XD", 6), XS, o.get("LA", 6), WR, R, o.get("BP", 2),
                             self.x_ops_fn(NTB, AX, XS, per, " sc1"), dma_ops, frag_ops, mfma, wait2=True)
        a(f"""
        s_and_b32 s52, s27, 1
        s_mul_i32 s52, s52, {1792*2048}
        s_lshr_b32 s53, s27, 1
        s_lshl_b32 s53, s53, 8
        s_add_u32 s52, s52, s53
        s_sub_u32 s53, {1792*2048}, s53
        """)
        self.srd(28, 16, "s52", "s53")
        a(f"""
        s_lshl_b32 s48, s3, 11
        s_and_b32 s52, s3, 1
        s_lshl_b32 s52, s52, 3
        v_lshlrev_b32 v4, 1, v2
        v_or_b32 v4, s52, v4
        v_xor_b32 v4, v4, v1
        v_lshlrev_b32 v4, 4, v4
        v_lshl_add_u32 v4, v2, 11, v4
        s_lshl_b32 s52, s3, 14
        v_add_u32 v4, s52, v4
        v_add_u32 v5, {8192 - 1024}, v4
        """)
        self.rot_init("s49", "s60", 65536, per)
        bg = []
        for u in range(lp.pre):
            m0, l, post = lp.dma_ops(u)
            bg.append([m0, "s_nop 0", l[0]]); bg.append([l[1]] + post)
        n = 6 if self.opt.get("p4", {}).get("R", 4) == 8 else min(16, len(bg))
        self.p5_late = bg[n:]
        return bg[:n]
    def p5_setup(self):
        a = self.a; ACC = 32
        a("""
        v_lshrrev_b32 v14, 2, v1
        v_lshl_add_u32 v15, v2, 3, v14
        v_lshlrev_b32 v15, 8, v15
        v_and_b32 v13, 3, v0
        v_lshl_add_u32 v15, v13, 3, v15
        v_xor_b32 v13, s27, v2
        v_and_b32 v13, 1, v13
        v_lshl_add_u32 v14, v13, 2, v14
        v_lshl_add_u32 v6, v14, 5, v15
        """)
        for j in range(1, 8): a(f"v_xor_b32 v{6+j}, {32*j}, v6")
        for j in range(8): a(f"v_add_u32 v{160+j}, 65536, v{6+j}")
        a(f"""
        s_lshl_b32 s56, s26, 2
        s_add_u32 s56, s56, s3
        s_mul_i32 s52, s56, 229376
        s_and_b32 s53, s27, 1
        s_mul_i32 s53, s53, 114688
        s_add_u32 s52, s52, s53
        s_add_u32 s52, s52, {WS_HH}
        """)
        self.srd(36, 22, "s52", 114688)
        a("v_lshlrev_b32 v3, 9, v2\nv_lshl_add_u32 v3, v1, 4, v3")
        self.rot_init("s50", "s59", 2048, self.per5)
        a("""
        v_lshrrev_b32 v14, 1, v2
        v_and_b32 v15, 1, v2
        v_lshlrev_b32 v139, 11, v1
        v_lshl_add_u32 v139, v15, 5, v139
        v_lshl_add_u32 v139, v14, 4, v139
        s_lshl_b32 s52, s56, 16
        s_lshl_b32 s53, s27, 7
        s_add_u32 s52, s52, s53
        s_sub_u32 s53, 65536, s53
        """)
        self.srd(40, 18, "s52", "s53")
        a(f"""
        s_lshl_b32 s52, s26, 4
        s_add_u32 s52, s52, s27
        s_lshl_b32 s57, s52, 7
        s_lshl_b32 s53, s3, 2
        s_add_u32 s57, s57, s53
        s_add_u32 s57, s57, {SY_FLAG + 16}
        s_and_b32 s52, s52, -2
        s_lshl_b32 s52, s52, 15
        """)
        self.srd(32, 22, "s52" if WS_XC == 0 else None, 65536)
        a("""
        s_and_b32 s52, s27, 1
        s_lshl_b32 s52, s52, 2
        s_add_u32 s52, s52, s3
        s_lshl_b32 s52, s52, 13
        v_lshlrev_b32 v137, 4, v0
        v_add_u32 v137, s52, v137
        v_xor_b32 v138, 0x8000, v137
        """)
        self.r5 = self.rstd_loads("s_lshl_b32 s52, s56, 5", 2, 128, 14)
        for r in range(64): a(f"v_mov_b32 v{ACC+r}, 0")
        for r in range(32): a(f"v_accvgpr_read_b32 v{96+r}, a{128+r}")
    def p5_main(self):
        a = self.a; lp = self.lp5; ACC = 32; NTB = 2
        self.emit(lp.prologue_x())
        self.emit(self.r5); lp.note_vm(len(self.r5), ("init", 0))
        a("s_mov_b32 s53, 32768\ns_mov_b32 s54, 4096")
        self.emit(lp.start())
        self.stamp("p5go")
        self.emit(lp.loop("P5_loop"))
        self.stamp("_p5end")
        for i in range(8):
            a(f"buffer_store_dwordx4 v[{64+4*i}:{67+4*i}], v137, s[32:35], {'s54' if i >= 4 else '0'} offen offset:{1024*(i&3)} sc1")
        self.rstd_finish(2, 128, 140, 14)
        a(f"""
        v_lshlrev_b32 v16, 20, v0
        v_mov_b32 v17, s10
        s_xor_b32 s52, s57, 128
        v_mov_b32 v18, s52
        s_waitcnt vmcnt(0)
        buffer_store_dword v17, v16, s[64:67], s57 offen sc1
        s_mov_b32 s52, 0x40000
        s_sleep {self.opt.get("sl5", 6)}
        S5_poll:
        buffer_load_dword v19, v18, s[64:67], 0 offen sc1
        s_waitcnt vmcnt(0)
        v_cmp_ne_u32 vcc, s10, v19
        s_sub_u32 s52, s52, 1
        s_cbranch_scc1 S5_ok
        s_cbranch_vccnz S5_poll
        S5_ok:
        """)
        self.stamp("_s5seen")
        for i in range(8):
            a(f"buffer_load_dwordx4 v[{64+4*i}:{67+4*i}], v138, s[32:35], {'s54' if i >= 4 else '0'} offen offset:{1024*(i&3)} sc1")
        acc = lambda j, tb, r: ACC + (j * NTB + tb) * 4 + r
        n = 0
        for jp in range(2):
            a(f"s_waitcnt vmcnt({4 if jp == 0 else 2})")
            for tb in range(2):
                t = 144 + 4 * n; n += 1
                for h in range(2):
                    j = 2 * jp + h
                    for p in range(2):
                        x = acc(j, tb, 2 * p)
                        a(f"v_pk_add_f32 v[{x}:{x+1}], v[{x}:{x+1}], v[{x+32}:{x+33}]")
                        a(f"v_pk_fma_f32 v[{x}:{x+1}], v[{x}:{x+1}], v[{140+2*tb}:{141+2*tb}], v[{x+64}:{x+65}] op_sel_hi:[1,0,1]")
                    for p in range(2): a(f"v_cvt_pk_bf16_f32 v{t+2*h+p}, v{acc(j,tb,2*p)}, v{acc(j,tb,2*p+1)}")
                a(f"v_permlane16_swap_b32 v{t}, v{t+2}\nv_permlane16_swap_b32 v{t+1}, v{t+3}")
                a(f"buffer_store_dwordx4 v[{t}:{t+3}], v139, s[40:43], {'s53' if tb else '0'} offen offset:{64*jp}")

    def mega(self):
        a = self.a; o = self.opt
        ct = o.get("code_touch", 1)
        qpart = self.p1()
        self.stamp("_s1a")
        qpart()
        a(f"""
        s_lshl_b32 s52, s56, 5
        s_add_u32 s52, s52, s3
        s_lshl_b32 s52, s52, 2
        s_add_u32 s63, s52, {SY_FLAG}
        v_mov_b32 v15, s10
        s_waitcnt vmcnt(0)
        buffer_store_dword v15, v14, s[64:67], s63 offen sc1
        """)
        self.stamp("_s1drain")
        bg = self.p3_early()
        self.p2_setup()
        self.touch_setup(12, 7340032 if o.get("touch_p2", 2) == 1 else 3670016, 246)
        self.p2_tail = []
        if o.get("touch_p2", 1):
            bg.insert(0, ["buffer_load_dword v240, v246, s[68:71], 0 offen"])
            a("s_mov_b32 s60, s52")
            self.p2_tail = ["s_add_u32 s68, s14, s60", "s_addc_u32 s69, s15, 0"]
        self.stamp("_s1setup")
        for which in range(2):
            a(f"""
            s_cmp_lt_u32 s26, {2 - which}
            s_cbranch_scc1 S1_ok{which}
            s_sub_u32 s52, s63, {2048 * (2 - which)}
            v_mov_b32 v12, s52
            s_mov_b32 s52, 0x40000
            S1_poll{which}:
            buffer_load_dword v13, v12, s[64:67], 0 offen sc1
            s_waitcnt vmcnt({0})
            v_cmp_ne_u32 vcc, s10, v13
            s_sub_u32 s52, s52, 1
            s_cbranch_scc1 S1_ok{which}
            s_cbranch_vccnz S1_poll{which}
            S1_ok{which}:
            """)
        self.stamp("_s1seen")
        self.p2_halo(0); self.p2_halo(1)
        n = self.p3_small()
        if ct: self.code_touch("C_p3", "C_end", 1, 14, 241)
        a(f"s_waitcnt vmcnt({n}) lgkmcnt(0)\ns_barrier")
        self.stamp("p2go")
        self.p2_main(bg)
        self.stamp("p2end")
        a("C_p3:")
        self.signal("s_lshl_b32 s52, s26, 5\ns_add_u32 s52, s52, s27\ns_lshl_b32 s52, s52, 2\ns_add_u32 s52, s52, 2048", 16, 17, nm="s2", pre=lambda: (a("s_waitcnt vmcnt(2)"), self.p3_setup()))
        self.lp3.vm = []; self.lp3.note_vm(1, ("D", 0))
        self.wait("s_lshl_b32 s52, s26, 7\ns_add_u32 s52, s52, 2048", 12, 13, nm="s2", n=16)
        self.p3_main()
        self.stamp("p3epi")
        self.signal("s_lshr_b32 s52, s26, 1\ns_lshl_b32 s52, s52, 2\ns_and_b32 s57, s26, 1\ns_add_u32 s52, s52, s57\ns_lshl_b32 s52, s52, 4\ns_add_u32 s52, s52, s27\ns_lshl_b32 s52, s52, 2\ns_add_u32 s52, s52, 4096", 10, 11, nm="s3", pre=lambda: self.p4_setup(**o.get("p4", {})))
        self.emit(self.lp4.prologue_dma() + getattr(self, 'p4_post', []))
        self.wait("s_lshl_b32 s52, s24, 8\ns_add_u32 s52, s52, 4096", 10, 11, nm="s3")
        self.p4_main()
        bg = self.p5_early()
        self.p4_epilogue(bg)
        self.stamp("p4epi")
        self.signal("s_lshl_b32 s52, s24, 6\ns_add_u32 s52, s52, s25\ns_lshl_b32 s52, s52, 2\ns_add_u32 s52, s52, 6144", 16, 17, nm="s4", pre=self.p5_setup)
        self.lp5.vm = []; self.lp5.note_vm(1, ("D", 0))
        for k, grp in enumerate(self.p5_late): self.emit(grp); self.lp5.note_vm(1, ("D", self.lp5.pre - (len(self.p5_late) - 1 - k) // 2 - 1))
        self.wait("s_lshr_b32 s52, s26, 1\ns_lshl_b32 s52, s52, 8\ns_add_u32 s52, s52, 6144", 16, 17, nm="s4")
        self.p5_main()
        self.stamp("end")
        a("C_end:")

HEADER = open("cdna_kernels/" + KNAME + ".s.ref").read().split("; Override")[0]

def build_file(timers=False, **opt):
    name = KNAME + "_kernel"
    g = Gen(timers, **opt)
    g.entry("L_end")
    g.mega()
    g.dump_timers(0)
    g.a("L_end:\ns_endpgm")
    hdr = HEADER
    if timers: hdr += "; stamps 0: " + " ".join(g.names) + "\n"
    hdr += f"; @launch grid=(256,1,1) block=(256,1,1) lds={LDS_TOTAL}\n"
    return hdr + TARGET + kernel_header(name) + g.a.text() + kernel_desc(name, 256, 168)

A = "entry _karg p1go p1end _s1a _s1drain _s1setup _s1seen p2go p2end _s2drain _s2setup _s2seen".split()
B = "entry p2end _s2seen p3go _p3end p3epi _s3drain _s3setup _s3seen p4go".split()
C = "entry p4go p4end p4epi _s4drain _s4setup _s4seen p5go _p5end _s5seen end".split()
if __name__ == "__main__":
    open("mega.s", "w").write(build_file())
    open("mega_t.s", "w").write(build_file(timers=True))
    open("mega_rt_t.s", "w").write(build_file(timers=True, rt=1))
    p8 = dict(R=8, L=4, XD=3, U=8, BP=2)
    for nm, kw in dict(gud=dict(), full_d=dict(touch_p2=1, touch_p4="d", tmask=3), p3gu_d=dict(touch_p3="gu", touch_p4="d", tmask=3), p3d_gu=dict(touch_p3="d", touch_p4="gu"),
                       rot_d=dict(p4=dict(U=8, per=8, XD=3), touch_p4="d", tmask=3), p3g_ud=dict(touch_p3="g", touch_p4="ud")).items():
        try: open(f"v_{nm}_rt_t.s", "w").write(build_file(timers=True, rt=1, **kw))
        except AssertionError as e: print(nm, "invalid", e)
    for n, l in (("a", A), ("b", B), ("c", C)): open(f"mega_{n}_t.s", "w").write(build_file(timers=l))
```
